```python
import torch

def _softmax(x, axis=-1):
    return torch.softmax(x, dim=axis)
def _gelu(x):
    return torch.nn.functional.gelu(x, approximate="tanh")
def _silu(x):
    return torch.nn.functional.silu(x)
def _sigmoid(x):
    return torch.sigmoid(x)
def _layernorm(x, axis=-1, eps=1e-5):
    m = x.mean(dim=axis, keepdim=True)
    v = x.var(dim=axis, keepdim=True, unbiased=False)
    return (x - m) / torch.sqrt(v + eps)
def _scatter_add(tgt, idx, src, axis=0):
    return tgt.clone().index_add_(axis, idx, src)
def _segment_sum(src, seg, n):
    out = torch.zeros((n,) + src.shape[1:], dtype=src.dtype)
    return out.index_add_(0, seg, src)
def _pad(x, pw):
    flat = tuple(v for pair in reversed(pw) for v in pair)
    return torch.nn.functional.pad(x, flat)

kernel_name = 'gated_mix__linear_attn_block__dense_activation_squared_relu__prompt'

def setup_inputs():

    _w = (lambda a: (lambda t: t.to(torch.bfloat16) if t.is_floating_point() else t)(torch.as_tensor(a)))
    def _A_setup():
        B, S, D = 1, 2048, 512
        return {
            "x": _w((lambda *s: torch.randn(*s, dtype=torch.bfloat16) * 0.05)(B, S, D)),
            "wqkv": _w((lambda *s: torch.randn(*s, dtype=torch.bfloat16) * 0.8)(D, 3 * D)),
            "wo": _w((lambda *s: torch.randn(*s, dtype=torch.bfloat16) * 0.2)(D, D)),
        }
    _A_in = _A_setup()

    def _B_setup():
        B, S, D, F = 1, 2048, 512, 1792
        return {
            "x": _w((lambda *s: torch.randn(*s, dtype=torch.bfloat16) * 0.05)(B, S, D)),
            "w1": _w((lambda *s: torch.randn(*s, dtype=torch.bfloat16) * 0.1)(D, F)),
            "b1": _w((lambda *s: torch.randn(*s, dtype=torch.bfloat16) * 0.05)(F)),
            "w2": _w((lambda *s: torch.randn(*s, dtype=torch.bfloat16) * 0.05)(F, D)),
            "b2": _w((lambda *s: torch.randn(*s, dtype=torch.bfloat16) * 0.05)(D)),
        }
    _B_in = _B_setup()

    return {
        "A_x": _A_in["x"],
        "A_wqkv": _A_in["wqkv"],
        "A_wo": _A_in["wo"],
        "B_x": _B_in["x"],
        "B_w1": _B_in["w1"],
        "B_b1": _B_in["b1"],
        "B_w2": _B_in["w2"],
        "B_b2": _B_in["b2"],
        "gate_w": _w((lambda *s: torch.randn(*s, dtype=torch.bfloat16) * 0.05)(512) * 16.0),
    }

def reference(A_x, A_wqkv, A_wo, B_x, B_w1, B_b1, B_w2, B_b2, gate_w):
    def _A_ref(x, wqkv, wo):
        B, S, D = x.shape
        H = 32; Dh = D // H
        qkv = (lambda x, *d: x.permute(*d))((x @ wqkv).reshape(B, S, 3, H, Dh), 2, 0, 3, 1, 4)
        q, k, v = qkv[0], qkv[1], qkv[2]
        phi = lambda t: torch.where(t > 0, t + 1, torch.exp(t)) + 1e-6
        pq, pk = phi(q), phi(k)
        kv = torch.einsum("bhsd,bhse->bhde", pk, v)
        z = torch.einsum("bhsd->bhd", pk)
        num = torch.einsum("bhqd,bhde->bhqe", pq, kv)
        den = torch.einsum("bhqd,bhd->bhq", pq, z)[..., None] + 1e-6
        o = num / den
        return (lambda x, *d: x.permute(*d))(o, 0, 2, 1, 3).reshape(B, S, D) @ wo

    def _B_ref(x, w1, b1, w2, b2):
        h = torch.einsum("bsd,df->bsf", x, w1) + b1
        zero = torch.zeros_like(h)
        r = torch.where(h > zero, h, zero)
        h = r * r
        out = torch.einsum("bsf,fd->bsd", h, w2) + b2
        return out

    x = A_x
    g = _sigmoid((x * gate_w).sum(-1, keepdims=True))
    a = _A_ref(x, A_wqkv, A_wo)
    b = _B_ref(x, B_w1, B_b1, B_w2, B_b2)
    return g * a + (1 - g) * b
```

```python
import re, copy

TRANS = ('v_exp_f32', 'v_rcp_f32', 'v_log_f32', 'v_rsq_f32', 'v_sqrt_f32', 'v_sin_f32', 'v_cos_f32')
NODST_S = ('s_cmp', 's_cbranch', 's_waitcnt', 's_barrier', 's_nop', 's_sleep', 's_setprio', 's_branch',
           's_endpgm', 's_bitcmp')

def regs_of(op):
    op = op.strip()
    op = op.lstrip('-')
    m = re.fullmatch(r'abs\((.*)\)', op)
    if m: op = m.group(1)
    m = re.fullmatch(r'\|(.*)\|', op)
    if m: op = m.group(1)
    m = re.fullmatch(r'v(\d+)', op)
    if m: return {int(m.group(1))}, set()
    m = re.fullmatch(r'v\[(\d+):(\d+)\]', op)
    if m: return set(range(int(m.group(1)), int(m.group(2)) + 1)), set()
    m = re.fullmatch(r's(\d+)', op)
    if m: return set(), {int(m.group(1))}
    m = re.fullmatch(r's\[(\d+):(\d+)\]', op)
    if m: return set(), set(range(int(m.group(1)), int(m.group(2)) + 1))
    if op in ('vcc', 'vcc_lo', 'vcc_hi'): return set(), {'vcc'}
    if op in ('exec', 'exec_lo', 'exec_hi'): return set(), {'exec'}
    if op == 'm0': return set(), {'m0'}
    return set(), set()

class Rec:
    __slots__ = ('kind', 'vw', 'vr', 'sw', 'sr', 'a', 'b', 'c', 'sdata', 'trans', 'mn', 'ws', 'lanerd', 'dma')
    def __init__(s):
        s.kind = 'other'; s.vw = set(); s.vr = set(); s.sw = set(); s.sr = set()
        s.a = set(); s.b = set(); s.c = set(); s.sdata = set(); s.trans = False; s.mn = ''; s.ws = 1
        s.lanerd = False; s.dma = False

def parse(text):
    t = text.split(';')[0].strip()
    mn, _, rest = t.partition(' ')
    rest = re.sub(r'\b(op_sel|op_sel_hi|neg_lo|neg_hi):\[[^\]]*\]', '', rest)
    parts = [x.strip() for x in rest.split(',')] if rest.strip() else []
    mods = []
    if parts:
        last = parts[-1].split()
        parts[-1] = last[0] if last else ''
        mods = last[1:]
    r = Rec(); r.mn = mn
    def rd(ops):
        for o in ops:
            v, s = regs_of(o); r.vr |= v; r.sr |= s
    def wr(o):
        v, s = regs_of(o); r.vw |= v; r.sw |= s
    if mn.startswith('v_mfma'):
        r.kind = 'mfma'; wr(parts[0]); rd(parts[1:])
        r.a = regs_of(parts[1])[0]; r.b = regs_of(parts[2])[0]; r.c = regs_of(parts[3])[0]
    elif mn.startswith('v_'):
        r.kind = 'valu'
        wr(parts[0]); rd(parts[1:])
        if mn.startswith(('v_fmac', 'v_dot2c', 'v_writelane', 'v_permlane')): rd(parts[:1])
        if mn.startswith('v_permlane'): wr(parts[1])
        if mn.startswith(('v_readfirstlane', 'v_readlane')): r.lanerd = True
        if mn.startswith(TRANS): r.trans = True
        assert '_co_' not in mn
    elif mn.startswith('ds_read'):
        r.kind = 'ds'; wr(parts[0]); rd(parts[1:])
    elif mn.startswith('ds_write'):
        r.kind = 'ds'; rd(parts)
    elif mn.startswith('buffer_load'):
        r.kind = 'vmem'
        if 'lds' in mods: rd(parts); r.sr.add('m0'); r.dma = True
        else: wr(parts[0]); rd(parts[1:])
    elif mn.startswith('buffer_store'):
        r.kind = 'vmem'; rd(parts)
        if mn.endswith(('x3', 'x4')): r.sdata = regs_of(parts[0])[0]
    elif mn.startswith('global_load_lds'):
        r.kind = 'vmem'; rd(parts); r.sr.add('m0'); r.dma = True
    elif mn.startswith('global_load'):
        r.kind = 'vmem'; wr(parts[0]); rd(parts[1:])
    elif mn.startswith('global_store'):
        r.kind = 'vmem'; rd(parts)
        if mn.endswith(('x3', 'x4')): r.sdata = regs_of(parts[1])[0]
    elif mn.startswith(('buffer_wbl2', 'buffer_inv')):
        r.kind = 'vmem'
    elif mn.startswith(('s_load', 's_memrealtime', 's_memtime')):
        r.kind = 'smem'; wr(parts[0]); rd(parts[1:])
    elif mn.startswith('s_'):
        r.kind = 'salu'
        if mn.startswith(NODST_S): rd(parts)
        else:
            wr(parts[0]); rd(parts[1:])
            if 'saveexec' in mn: r.sw.add('exec')
        if mn == 's_nop': r.ws = int(parts[0], 0) + 1
    else:
        raise ValueError('unknown instr ' + text)
    return r

class Em:
    def __init__(s):
        s.lines = []; s.hist = []
        s.vm = []
        s.lg = []
        s.nop_count = 0
        s.ninstr = 0
    def save(s): return (list(s.hist), list(s.vm), list(s.lg))
    def restore(s, st): s.hist, s.vm, s.lg = list(st[0]), list(st[1]), list(st[2])
    def raw(s, t): s.lines.append(t)
    def c(s, t): s.lines.append('    ; ' + t)
    def label(s, name, flush=True):
        s.lines.append(name + ':')
        if flush: s.flush()
    def flush(s):
        s._put('s_nop 7', parse('s_nop 7'))
    def _put(s, text, r):
        s.lines.append('    ' + text); s.hist.append(r); s.ninstr += 1
        if len(s.hist) > 40: s.hist = s.hist[-40:]
    def _need(s, r):
        need = 0; dist = 0
        for p in reversed(s.hist):
            req = 0
            if p.kind == 'valu':
                if r.kind == 'mfma' and (p.vw & r.vr): req = max(req, 2)
                if r.kind in ('valu', 'mfma') and (p.sw & r.sr): req = max(req, 2)
                if r.kind == 'vmem' and (p.sw & r.sr): req = max(req, 5)
                if r.kind == 'salu' and (p.sw & r.sr): req = max(req, 1)
                if r.kind == 'salu' and r.mn.startswith('s_cbranch_vcc') and 'vcc' in p.sw: req = max(req, 2)
                if r.lanerd and (p.vw & r.vr): req = max(req, 1)
                if r.mn.startswith('v_permlane') and (p.vw & r.vr): req = max(req, 2)
                if p.trans and (p.vw & r.vr) and not r.trans: req = max(req, 1)
            if p.kind == 'mfma':
                if r.kind == 'mfma':
                    if p.vw & (r.a | r.b): req = max(req, 8)
                    if (p.vw & r.c) and p.vw != r.c: req = max(req, 6)
                    if (p.vw & r.vw) and not (p.vw == r.c and r.c == r.vw): req = max(req, 6)
                elif r.kind in ('valu', 'vmem', 'ds'):
                    if p.vw & (r.vr | r.vw): req = max(req, 8)
                    if r.kind == 'valu' and (p.c & r.vw): req = max(req, 3)
            if p.kind == 'salu' and 'm0' in p.sw and r.dma: req = max(req, 1)
            if p.sdata and (p.sdata & r.vw): req = max(req, 2)
            need = max(need, req - dist)
            dist += p.ws
            if dist >= 12: break
        return need
    def _autowait(s, r):
        touched = r.vr | r.vw
        iv = max([k for k, (t, d) in enumerate(s.vm) if d & touched], default=-1)
        il = max([k for k, (t, d) in enumerate(s.lg) if d & touched], default=-1)
        if iv >= 0 or il >= 0: s._wait(iv, il)
    def _wait(s, iv, il):
        parts = []
        if iv >= 0:
            n = min(len(s.vm) - iv - 1, 63); parts.append('vmcnt(%d)' % n); s.vm = s.vm[len(s.vm) - n:] if n else []
        if il >= 0:
            n = min(len(s.lg) - il - 1, 15); parts.append('lgkmcnt(%d)' % n); s.lg = s.lg[len(s.lg) - n:] if n else []
        t = 's_waitcnt ' + ' '.join(parts)
        s._put(t, parse(t))
    def i(s, text, tag=None):
        r = parse(text)
        s._autowait(r)
        n = s._need(r)
        if n > 0:
            s._put('s_nop %d' % (n - 1), parse('s_nop %d' % (n - 1))); s.nop_count += 1
        s._put(text, r)
        if r.kind == 'vmem': s.vm.append((tag, set(r.vw)))
        if r.kind == 'ds': s.lg.append((tag, set(r.vw)))
    def wait_vm(s, tag):
        iv = max([k for k, (t, d) in enumerate(s.vm) if t == tag], default=-1)
        if iv >= 0: s._wait(iv, -1)
    def wait_vm_all(s):
        t = 's_waitcnt vmcnt(0)'; s._put(t, parse(t)); s.vm = []
    def wait_lg_all(s):
        t = 's_waitcnt lgkmcnt(0)'; s._put(t, parse(t)); s.lg = []
    def wait_all(s):
        t = 's_waitcnt vmcnt(0) lgkmcnt(0)'; s._put(t, parse(t)); s.vm = []; s.lg = []
    def text(s): return '\n'.join(s.lines) + '\n'

def vr(b, n=1): return 'v%d' % b if n == 1 else 'v[%d:%d]' % (b, b + n - 1)
def sr(b, n=1): return 's%d' % b if n == 1 else 's[%d:%d]' % (b, b + n - 1)
```

```python
import sys
from asmlib import Em, vr, sr

NAME = 'gated_mix__linear_attn_block__dense_activation_squared_relu__prompt'
PROF = '--prof' in sys.argv
OUT = [a for a in sys.argv[1:] if not a.startswith('--')]
OUT = OUT[0] if OUT else 'cdna_kernels/%s.s' % NAME

R = lambda k: k * 16384
GATE = R(9); GS = R(9) + 1024; ZB = R(9) + 1536; KVB = R(9) + 4096
WS_KVF = 0x1000; WS_HF = 0x2000; WS_XF = 0x4000; WS_PROF = 0x10000
WS_KVP = 0x100000; WS_ZP = 0x180000; WS_EX = 0x200000; WS_AB = 0x800000
P_QKV = 3072; P_W1 = 3584
LOG2E = 0x3fb8aa3b; EPS = 0x358637bd

sB_, sW, sP, sI, sJ, sC, sRr, sRot, sA_, sH2, sT = 2, 3, 4, 5, 6, 7, 8, 9, 10, 11, 12
t0, t1, t2 = 13, 14, 15
pX, pQKV, pWO, pBX, pW1, pB1, pW2, pB2, pG, pOUT, pDBG, pWS = 16, 18, 20, 22, 24, 26, 28, 30, 32, 34, 36, 38
dX, dQKV, dW1, dW2, dWO, dWS, dOUT = 40, 44, 48, 52, 56, 60, 64
sMX, sMW, sV, sHB = 68, 69, 70, 71
sAb = 72
sSl = 74
t3, t4, t5 = 77, 78, 79
sA2 = 80
sLog2e, sEps = 84, 85
sSpin = 86
sStamp = 88

vLane, vL16, vL8 = 1, 2, 3
vXa = 4; vWa = 12; vGa = 14; vUa = 15; vXo = 16; vAo = 18; vBo = 19; vUo = 20; vSo = 22
vG0, vG1, vOm0, vOm1, vEp = 23, 24, 25, 26, 27
vt = 28
vBias = 32
aG0, aG1, aGt = 44, 60, 76
vF = 80
vT2 = 120
Xf = lambda t, s, mt: 128 + ((t * 2 + s) * 2 + mt) * 4

e = Em()
I = e.i
nstamp = [0]
def stamp():
    if not PROF: return
    k = nstamp[0]; nstamp[0] += 1
    assert k < 7
    e.wait_lg_all()
    I('s_memrealtime %s' % sr(sStamp + 2 * k, 2))
    e.wait_lg_all()

class LdsAddr:
    def __init__(s, regs, base): s.regs = regs; s.base = base
    def off(s, addr, span=0):
        o = addr - s.base
        if o < 0 or o + span > 65535:
            for r_ in s.regs: I('v_add_u32 %s, %d, %s' % (vr(r_), addr - s.base, vr(r_)))
            s.base = addr; o = 0
        return o

def srd(d, p, nbytes):
    I('s_mov_b32 %s, %s' % (sr(d), sr(p)))
    I('s_and_b32 %s, %s, 0xffff' % (sr(d + 1), sr(p + 1)))
    I('s_mov_b32 %s, 0x%x' % (sr(d + 2), nbytes))
    I('s_mov_b32 %s, 0x20000' % sr(d + 3))

def dma(voff, d, soff, m0base, m0const, tag):
    I('s_add_u32 m0, %s, %d' % (sr(m0base), m0const))
    I('buffer_load_dwordx4 %s, %s, %s offen lds' % (vr(voff), sr(d, 4), soff), tag)

def kc_of(t, dst):
    I('s_add_u32 %s, %s, %d' % (sr(dst), sr(sRot), t))
    I('s_and_b32 %s, %s, 7' % (sr(dst), sr(dst)))

def mfma(d, a, b, c):
    I('v_mfma_f32_16x16x32_bf16 %s, %s, %s, %s' % (vr(d, 4), vr(a, 4), vr(b, 4), c if isinstance(c, str) else vr(c, 4)))

def spin(label, load, nl_mask_lo, nl_mask_hi=0):
    I('s_mov_b32 %s, 0' % sr(sSpin))
    I('s_mov_b32 exec_lo, 0x%x' % nl_mask_lo); I('s_mov_b32 exec_hi, 0x%x' % nl_mask_hi)
    e.label(label, flush=False)
    I(load)
    e.wait_vm_all()
    I('v_cmp_ne_u32 vcc, %s, %s' % (sr(sT), vr(vEp)))
    I('s_add_u32 %s, %s, 1' % (sr(sSpin), sr(sSpin)))
    I('s_cbranch_vccz %s_done' % label)
    I('s_cmp_lt_u32 %s, 0x100000' % sr(sSpin))
    I('s_sleep 1')
    I('s_cbranch_scc1 %s' % label)
    e.label(label + '_done', flush=False)
    I('s_mov_b64 exec, -1')

I('s_cmp_ge_u32 s2, 256')
I('s_cbranch_scc1 L_end')
I('s_load_dwordx16 s[16:31], s[0:1], 0')
I('s_load_dwordx8 s[32:39], s[0:1], 64')
if PROF:
    I('s_memrealtime %s' % sr(sStamp, 2)); nstamp[0] = 1
I('v_lshrrev_b32 v28, 6, v0')
I('v_and_b32 %s, 63, v0' % vr(vLane))
I('v_readfirstlane_b32 %s, v28' % sr(sW))
I('s_and_b32 %s, s2, 1' % sr(sP))
I('s_bfe_u32 %s, s2, 0x20001' % sr(t0))
I('s_lshr_b32 %s, s2, 6' % sr(t1))
I('s_lshl_b32 %s, %s, 2' % (sr(sI), sr(t0)))
I('s_add_u32 %s, %s, %s' % (sr(sI), sr(sI), sr(t1)))
I('s_bfe_u32 %s, s2, 0x30003' % sr(sJ))
I('s_lshr_b32 %s, %s, 2' % (sr(sC), sr(sJ)))
I('s_and_b32 %s, %s, 3' % (sr(sRr), sr(sJ)))
I('s_lshl_b32 %s, %s, 1' % (sr(t1), sr(t1)))
I('s_add_u32 %s, %s, %s' % (sr(sRot), sr(sJ), sr(t1)))
I('s_and_b32 %s, %s, 7' % (sr(sRot), sr(sRot)))
I('s_lshr_b32 %s, %s, 1' % (sr(sA_), sr(sW)))
I('s_and_b32 %s, %s, 1' % (sr(sH2), sr(sW)))
I('s_lshl_b32 %s, %s, 11' % (sr(sMX), sr(sW)))
I('s_lshl_b32 %s, %s, 10' % (sr(sMW), sr(sW)))
I('s_lshl_b32 %s, %s, 1' % (sr(t0), sr(sP)))
I('s_add_u32 %s, %s, %s' % (sr(t0), sr(t0), sr(sC)))
I('s_mul_i32 %s, %s, 7' % (sr(sHB), sr(t0)))
I('s_lshl_b32 %s, %s, 1' % (sr(sV), sr(t0)))
I('s_and_b32 %s, %s, 1' % (sr(t1), sr(sRr)))
I('s_add_u32 %s, %s, %s' % (sr(sV), sr(sV), sr(t1)))
I('s_mov_b32 %s, 0x%x' % (sr(sLog2e), LOG2E))
I('s_mov_b32 %s, 0x%x' % (sr(sEps), EPS))
I('v_lshrrev_b32 v28, 3, %s' % vr(vLane))
I('v_and_b32 v29, 7, %s' % vr(vLane))
I('v_lshrrev_b32 v30, 4, %s' % vr(vLane))
I('v_lshlrev_b32 %s, 4, %s' % (vr(vL16), vr(vLane)))
I('v_lshlrev_b32 %s, 3, %s' % (vr(vL8), vr(vLane)))
I('s_lshl_b32 %s, %s, 3' % (sr(t0), sr(sI)))
I('s_add_u32 %s, %s, %s' % (sr(t0), sr(t0), sr(sW)))
I('s_lshl_b32 %s, %s, 14' % (sr(t0), sr(t0)))
I('v_xor_b32 v31, v29, v30')
I('v_lshlrev_b32 v31, 4, v31')
I('v_lshl_add_u32 v31, v28, 10, v31')
I('v_add_u32 %s, %s, v31' % (vr(vXo), sr(t0)))
I('v_xor_b32 %s, 64, %s' % (vr(vXo + 1), vr(vXo)))
I('v_add_u32 %s, 0x2000, %s' % (vr(vXo + 1), vr(vXo + 1)))
I('v_lshlrev_b32 v120, 1, v30')
I('v_xor_b32 v120, v29, v120')
I('v_lshlrev_b32 v120, 4, v120')
I('s_lshl_b32 %s, %s, 3' % (sr(t0), sr(sW)))
I('v_add_u32 v121, %s, v28' % sr(t0))
e.wait_lg_all()
I('s_or_b32 %s, s2, %s' % (sr(t0), sr(sW)))
I('s_cmp_eq_u32 %s, 0' % sr(t0))
I('v_mov_b32 v123, 0')
I('s_cselect_b64 exec, 1, 0')
I('global_load_dword %s, v123, %s sc0 sc1' % (vr(vEp), sr(pWS, 2)))
I('s_mov_b64 exec, -1')
srd(dX, pX, 2048 * 1024)
srd(dQKV, pQKV, 512 * P_QKV)
srd(dW1, pW1, 512 * P_W1)

def x_dma(t):
    kc_of(t, t3)
    I('s_lshl_b32 %s, %s, 7' % (sr(t4), sr(t3)))
    dma(vXo, dX, sr(t4), sMX, R(t % 3), ('c', t))
    dma(vXo + 1, dX, sr(t4), sMX, R(t % 3) + 1024, ('c', t))
x_dma(0)
I('s_cmp_ge_u32 %s, 2' % sr(sRr))
I('s_cbranch_scc1 L_roleQ')
st0 = e.save(); ns0 = nstamp[0]

SLAB_REG = [0, 1, 3, 4, 6, 7, 2, 5, 8]
G2_REG = [6, 7, 2, 5]

def common_setup():
    srd(dW2, pW2, 1792 * 1024); srd(dWO, pWO, 512 * 1024); srd(dWS, pWS, 0x10000000); srd(dOUT, pOUT, 2048 * 1024)
    I('s_or_b32 %s, s2, %s' % (sr(t0), sr(sW)))
    I('s_cmp_lg_u32 %s, 0' % sr(t0))
    lab = 'L_noep%d' % len(e.lines)
    I('s_cbranch_scc1 %s' % lab)
    st = e.save()
    I('v_add_u32 v122, 1, %s' % vr(vEp))
    I('v_or_b32 v122, 1, v122')
    I('s_mov_b64 exec, 1')
    I('global_store_dword v123, v122, %s sc1' % sr(pDBG, 2))
    I('global_store_dword v123, v122, %s sc1' % sr(pWS, 2))
    I('s_mov_b64 exec, -1')
    e.restore(st)
    e.label(lab, flush=False)
    I('v_and_b32 v122, 15, %s' % vr(vLane))
    I('v_lshrrev_b32 v123, 1, v122')
    I('v_lshrrev_b32 v124, 1, v30')
    I('v_xor_b32 v123, v123, v124')
    I('v_lshlrev_b32 v123, 4, v123')
    I('v_lshl_add_u32 v123, v122, 7, v123')
    I('v_and_b32 v124, 1, v30')
    I('v_lshl_add_u32 v123, v124, 3, v123')
    I('v_add_u32 %s, %s, v123' % (vr(vXa), sr(sMX)))
    for k in (1, 2, 3): I('v_xor_b32 %s, %d, %s' % (vr(vXa + k), k * 32, vr(vXa)))
    for k in range(4): I('v_xor_b32 %s, 0x800, %s' % (vr(vXa + 4 + k), vr(vXa + k)))
    I('v_lshrrev_b32 v122, 2, %s' % vr(vLane))
    I('v_and_b32 v123, 3, v28')
    I('v_and_b32 v124, 3, %s' % vr(vLane))
    I('v_lshlrev_b32 v124, 3, v124')
    I('v_lshl_add_u32 %s, v122, 5, v124' % vr(vUa))
    I('v_add_u32 %s, %d, %s' % (vr(vUa), R(8), vr(vUa)))
    I('v_lshl_add_u32 v125, v122, 7, v124')
    I('v_lshl_add_u32 v125, v123, 5, v125')
    I('s_lshl_b32 %s, %s, 6' % (sr(t0), sr(sH2)))
    I('v_xor_b32 v125, %s, v125' % sr(t0))
    I('v_add_u32 %s, %d, v125' % (vr(vWa), R(3)))
    I('v_xor_b32 %s, 32, %s' % (vr(vWa + 1), vr(vWa)))
    I('v_lshlrev_b32 %s, 3, v30' % vr(vGa))
    I('v_add_u32 %s, %d, %s' % (vr(vGa), GATE, vr(vGa)))
    I('s_lshl_b32 %s, %s, 6' % (sr(t0), sr(sRot)))
    I('s_lshl_b32 %s, %s, 5' % (sr(t1), sr(sW)))
    I('s_add_u32 %s, %s, %s' % (sr(t0), sr(t0), sr(t1)))
    I('v_lshrrev_b32 v122, 1, %s' % vr(vLane))
    I('v_add_u32 v122, %s, v122' % sr(t0))
    I('v_and_b32 v123, 0x1ff, v122')
    I('v_xor_b32 v124, 0x100, v123')
    I('s_add_u32 %s, %s, 6' % (sr(t0), sr(sHB)))
    I('s_lshl_b32 %s, %s, 7' % (sr(t0), sr(t0)))
    I('s_lshl_b32 %s, %s, 5' % (sr(t1), sr(sRr)))
    I('s_add_u32 %s, %s, %s' % (sr(t5), sr(t0), sr(t1)))
    I('v_and_b32 v125, 1, %s' % vr(vLane))
    I('v_lshlrev_b32 v125, 4, v125')
    I('v_add_u32 v125, %s, v125' % sr(t5))
    I('s_movk_i32 %s, %d' % (sr(t0), P_W1))
    I('v_mad_u32_u24 %s, v123, %s, v125' % (vr(vUo), sr(t0)))
    I('v_mad_u32_u24 %s, v124, %s, v125' % (vr(vUo + 1), sr(t0)))
    I('v_lshlrev_b32 v126, 3, v30')
    I('v_add_u32 v122, %s, v126' % sr(t5))
    I('global_load_dwordx2 %s, v122, %s' % (vr(vBias + 8, 2), sr(pB1, 2)))
    I('s_lshl_b32 %s, %s, 14' % (sr(t0), sr(sH2)))
    I('s_lshl_b32 %s, %s, 7' % (sr(t1), sr(sJ)))
    I('s_add_u32 %s, %s, %s' % (sr(t0), sr(t0), sr(t1)))
    I('v_lshl_add_u32 %s, v28, 10, v120' % vr(vSo))
    I('v_add_u32 %s, %s, %s' % (vr(vSo), sr(t0), vr(vSo)))
    I('s_lshr_b32 %s, %s, 1' % (sr(t0), sr(sA_)))
    I('s_lshl_b32 %s, %s, 1' % (sr(t1), sr(sP)))
    I('s_add_u32 %s, %s, %s' % (sr(t0), sr(t0), sr(t1)))
    I('s_mul_i32 %s, %s, 7' % (sr(t0), sr(t0)))
    I('s_and_b32 %s, %s, 1' % (sr(t1), sr(sA_)))
    I('s_mul_i32 %s, %s, 3' % (sr(t2), sr(t1)))
    I('s_add_u32 %s, %s, %s' % (sr(t2), sr(t2), sr(t0)))
    I('s_lshl_b32 %s, %s, 16' % (sr(sSl), sr(t2)))
    I('s_add_u32 %s, %s, 6' % (sr(t0), sr(t0)))
    I('s_lshl_b32 %s, %s, 16' % (sr(t0), sr(t0)))
    I('s_lshl_b32 %s, %s, 15' % (sr(t1), sr(t1)))
    I('s_add_u32 %s, %s, %s' % (sr(sSl + 1), sr(t0), sr(t1)))
    I('s_lshl_b32 %s, %s, 2' % (sr(t0), sr(sP)))
    I('s_add_u32 %s, %s, %s' % (sr(t0), sr(t0), sr(sA_)))
    I('s_lshl_b32 %s, %s, 16' % (sr(sSl + 2), sr(t0)))
    I('s_lshl_b32 %s, %s, 4' % (sr(t0), sr(sP)))
    I('s_add_u32 %s, %s, %s' % (sr(t0), sr(t0), sr(sI)))
    I('s_lshl_b32 %s, %s, 3' % (sr(t0), sr(t0)))
    I('s_add_u32 %s, %s, %s' % (sr(t1), sr(t0), sr(sW)))
    I('s_xor_b32 %s, %s, 1' % (sr(t2), sr(t1)))
    I('s_mul_i32 %s, %s, %d' % (sr(t1), sr(t1), 36 * 1024))
    I('s_mul_i32 %s, %s, %d' % (sr(t2), sr(t2), 36 * 1024))
    I('s_add_u32 %s, %s, 0x%x' % (sr(sAb), sr(t1), WS_AB))
    I('s_add_u32 %s, %s, 0x%x' % (sr(sAb + 1), sr(t2), WS_AB))
    I('s_lshl_b32 %s, %s, 1' % (sr(t1), sr(sH2)))
    I('s_add_u32 %s, %s, %s' % (sr(t0), sr(t0), sr(t1)))
    I('s_lshl_b32 %s, %s, 2' % (sr(t1), sr(sP)))
    I('s_add_u32 %s, %s, %s' % (sr(t0), sr(t0), sr(t1)))
    I('s_xor_b32 %s, %s, 4' % (sr(t1), sr(t0)))
    I('s_mul_i32 %s, %s, %d' % (sr(t2), sr(sA_), 9 * 1024))
    I('s_add_u32 %s, %s, 0x%x' % (sr(t2), sr(t2), WS_AB))
    I('s_mul_i32 %s, %s, %d' % (sr(t0), sr(t0), 36 * 1024))
    I('s_mul_i32 %s, %s, %d' % (sr(t1), sr(t1), 36 * 1024))
    I('s_add_u32 %s, %s, %s' % (sr(sA2), sr(t1), sr(t2)))
    I('s_add_u32 %s, %s, %d' % (sr(sA2 + 1), sr(sA2), 36 * 1024))
    I('s_add_u32 %s, %s, %s' % (sr(sA2 + 2), sr(t0), sr(t2)))
    I('s_add_u32 %s, %s, %d' % (sr(sA2 + 3), sr(sA2 + 2), 36 * 1024))

def bias_init(acc_regs, pk):
    for a_ in acc_regs:
        I('v_lshlrev_b32 %s, 16, %s' % (vr(a_), vr(pk)))
        I('v_and_b32 %s, 0xffff0000, %s' % (vr(a_ + 1), vr(pk)))
        I('v_lshlrev_b32 %s, 16, %s' % (vr(a_ + 2), vr(pk + 1)))
        I('v_and_b32 %s, 0xffff0000, %s' % (vr(a_ + 3), vr(pk + 1)))

def slab_dma(ls):
    if ls < 6: base, d, add = sSl, dW2, ls * 32768
    elif ls == 6: base, d, add = sSl + 1, dW2, 0
    else: base, d, add = sSl + 2, dWO, (ls - 7) * 32768
    for ee in range(2):
        I('s_add_u32 %s, %s, %d' % (sr(t4), sr(base), add + ee * 8192))
        dma(vSo, d, sr(t4), sMX, R(SLAB_REG[ls]) + ee * 1024, 'slab')

def h_vals(src, dst2, om):
    for k in range(4): I('v_max_f32 %s, 0, %s' % (vr(src + k), vr(src + k)))
    for k in range(4): I('v_mul_f32 %s, %s, %s' % (vr(vT2 + k), vr(src + k), vr(om)))
    for k in range(4): I('v_mul_f32 %s, %s, %s' % (vr(src + k), vr(src + k), vr(vT2 + k)))
    I('v_cvt_pk_bf16_f32 %s, %s, %s' % (vr(dst2), vr(src), vr(src + 1)))
    I('v_cvt_pk_bf16_f32 %s, %s, %s' % (vr(dst2 + 1), vr(src + 2), vr(src + 3)))

def h_epi(acc, step_sgpr, fbuf):
    for mt in range(2):
        f = fbuf + 4 * mt
        for nt2 in range(2): h_vals(acc + (nt2 * 2 + mt) * 4, f + 2 * nt2, vOm0 + mt)
        I('s_add_u32 %s, %s, %s' % (sr(t4), sr(sAb + mt), sr(step_sgpr)))
        I('buffer_store_dwordx4 %s, %s, %s, %s offen sc1' % (vr(f, 4), vr(vL16), sr(dWS, 4), sr(t4)))

def h_step(q_sgpr, dst):
    I('s_cmp_ge_u32 %s, 3' % sr(q_sgpr))
    I('s_cselect_b32 %s, 3, 0' % sr(t0))
    I('s_lshl_b32 %s, %s, 1' % (sr(t1), sr(q_sgpr)))
    I('s_add_u32 %s, %s, %s' % (sr(t0), sr(t0), sr(t1)))
    I('s_add_u32 %s, %s, %s' % (sr(t0), sr(t0), sr(sH2)))
    I('s_mul_i32 %s, %s, 18' % (sr(t1), sr(sC)))
    I('s_add_u32 %s, %s, %s' % (sr(t0), sr(t0), sr(t1)))
    I('s_lshl_b32 %s, %s, 10' % (sr(dst), sr(t0)))

def phi4(src, dst2):
    for k in range(4): I('v_mul_f32 %s, %s, %s' % (vr(vT2 + k), sr(sLog2e), vr(src + k)))
    for k in range(4): I('v_exp_f32_e64 %s, %s clamp' % (vr(vT2 + k), vr(vT2 + k)))
    for k in range(4): I('v_max_f32 %s, 0, %s' % (vr(src + k), vr(src + k)))
    for k in range(4): I('v_add_f32 %s, %s, %s' % (vr(src + k), vr(src + k), vr(vT2 + k)))
    for k in range(4): I('v_add_f32 %s, %s, %s' % (vr(src + k), sr(sEps), vr(src + k)))
    I('v_cvt_pk_bf16_f32 %s, %s, %s' % (vr(dst2), vr(src), vr(src + 1)))
    I('v_cvt_pk_bf16_f32 %s, %s, %s' % (vr(dst2 + 1), vr(src + 2), vr(src + 3)))

def phase1(role):
    KV = role == 'KV'
    dA, pitchA, dB, pitchB = (dQKV, P_QKV, dW1, P_W1) if KV else (dW1, P_W1, dQKV, P_QKV)
    g1add = 1024 if KV else 128
    if KV:
        I('s_lshl_b32 %s, %s, 7' % (sr(t0), sr(sV)))
        I('s_add_u32 %s, %s, 1024' % (sr(t0), sr(t0)))
        I('s_add_u32 %s, %s, %s' % (sr(t1), sr(sHB), sr(sRr)))
        I('s_lshl_b32 %s, %s, 7' % (sr(t1), sr(t1)))
    else:
        I('s_lshl_b32 %s, %s, 1' % (sr(t0), sr(sRr)))
        I('s_add_u32 %s, %s, %s' % (sr(t0), sr(t0), sr(sHB)))
        I('s_sub_u32 %s, %s, 2' % (sr(t0), sr(t0)))
        I('s_lshl_b32 %s, %s, 7' % (sr(t0), sr(t0)))
        I('s_lshl_b32 %s, %s, 7' % (sr(t1), sr(sV)))
    I('s_movk_i32 %s, %d' % (sr(t2), pitchA))
    I('v_mad_u32_u24 %s, v121, %s, v120' % (vr(vAo), sr(t2)))
    I('v_add_u32 %s, %s, %s' % (vr(vAo), sr(t0), vr(vAo)))
    def w_dma(t):
        I('s_mul_i32 %s, %s, %d' % (sr(t4), sr(t3), 64 * pitchA))
        dma(vAo, dA, sr(t4), sMW, R(3 + t % 3), ('c', t))
        I('s_add_u32 %s, %s, %d' % (sr(t4), sr(t4), g1add))
        dma(vAo, dA, sr(t4), sMW, R(3 + t % 3) + 8192, ('c', t))
    w_dma(0)
    I('s_lshl_b32 %s, %s, 7' % (sr(t4), sr(sRot)))
    I('v_add_u32 v122, %s, %s' % (sr(t4), vr(vL16)))
    I('v_and_b32 v122, 0x3ff, v122')
    I('s_mov_b32 m0, %d' % GATE)
    I('global_load_lds_dwordx4 v122, %s' % sr(pG, 2), ('c', 0))
    I('s_lshl_b32 %s, %s, 6' % (sr(t4), sr(sH2)))
    I('s_add_u32 %s, %s, %s' % (sr(t4), sr(t4), sr(t1 if KV else t0)))
    I('v_lshlrev_b32 v122, 3, v30')
    I('v_add_u32 v122, %s, v122' % sr(t4))
    for k in range(2 if KV else 4):
        I('global_load_dwordx2 %s, v122, %s offset:%d' % (vr(vBias + 2 * k, 2), sr(pB1, 2), (k & 1) * 32 + (k >> 1) * 128))
    I('s_movk_i32 %s, %d' % (sr(t2), pitchB))
    I('v_mad_u32_u24 %s, v121, %s, v120' % (vr(vBo), sr(t2)))
    I('v_add_u32 %s, %s, %s' % (vr(vBo), sr(t1), vr(vBo)))
    x_dma(1); w_dma(1)
    common_setup()
    def g2_dma(q):
        for tt in (2 * q, 2 * q + 1):
            kc_of(tt, t3)
            I('s_mul_i32 %s, %s, %d' % (sr(t4), sr(t3), 64 * pitchB))
            dma(vBo, dB, sr(t4), sMW, R(G2_REG[q]) + (tt & 1) * 8192, ('g2', q))
    if not KV:
        for grp, a_ in ((0, aG0), (1, aG1)):
            for nt2 in range(2): bias_init([a_ + (nt2 * 2) * 4, a_ + (nt2 * 2 + 1) * 4], vBias + (grp * 2 + nt2) * 2)
    Wa = LdsAddr([vWa, vWa + 1], R(3))
    for t in range(8):
        e.c('pass1 chunk %d' % t)
        e.wait_vm(('c', t))
        I('s_barrier')
        if t == 0: stamp()
        def reads(s_):
            fb = vF + 20 * s_
            lst = []
            def xr(mt):
                for h in range(2):
                    lst.append('ds_read_b64 %s, %s offset:%d' % (vr(Xf(t, s_, mt) + 2 * h, 2), vr(vXa + mt * 4 + 2 * s_ + h), R(t % 3)))
            def wr(grp, nt2):
                for h in range(2):
                    lst.append('ds_read_b64_tr_b16 %s, %s offset:%d' % (vr(fb + (grp * 2 + nt2) * 4 + 2 * h, 2), vr(vWa + nt2),
                               R(t % 3) + grp * 8192 + s_ * 4096 + h * 2048))
            xr(0); wr(0, 0); xr(1); wr(0, 1); wr(1, 0); wr(1, 1)
            for h in range(2):
                lst.append('ds_read_b64 %s, %s offset:%d' % (vr(fb + 16 + 2 * h, 2), vr(vGa), t * 128 + s_ * 64 + h * 32))
            return lst
        def mms(s_):
            fb = vF + 20 * s_
            lst = []
            first = (t == 0 and s_ == 0)
            for grp, a_ in ((0, aG0), (1, aG1)):
                for nt2 in range(2):
                    for mt in range(2):
                        d = a_ + (nt2 * 2 + mt) * 4; w_ = fb + (grp * 2 + nt2) * 4; x_ = Xf(t, s_, mt)
                        c_ = '0' if (first and KV) else d
                        lst.append((d, x_, w_, c_) if KV else (d, w_, x_, c_))
            lst.append((aGt, fb + 16, Xf(t, s_, 0), '0' if first else aGt))
            return lst
        for x in reads(0): I(x)
        if t + 2 < 8: x_dma(t + 2); w_dma(t + 2)
        elif t == 6:
            g2_dma(0)
            for ee in range(2): dma(vUo + ee, dW1, '0', sMW, R(8) + ee * 8192, ('g2', 0))
            g2_dma(1)
        else:
            g2_dma(2); g2_dma(3)
        if t == 4:
            I('v_mov_b32 v122, 0')
            I('global_load_dword %s, v122, %s sc1' % (vr(vEp), sr(pDBG, 2)))
        r1 = reads(1); m0 = mms(0)
        for k, m in enumerate(m0):
            mfma(*m)
            for x in r1[k * 2:k * 2 + 2]: I(x)
        for m in mms(1): mfma(*m)
    stamp()
    I('v_readfirstlane_b32 %s, %s' % (sr(sT), vr(vEp)))
    I('s_cmp_lg_u32 %s, 0' % sr(sT))
    I('s_cbranch_scc1 L_ep_ok_%s' % role)
    st = e.save()
    I('s_mov_b32 %s, 0' % sr(sSpin))
    e.label('L_ep_loop_%s' % role, flush=False)
    I('global_load_dword %s, v122, %s sc1' % (vr(vEp), sr(pDBG, 2)))
    e.wait_vm_all()
    I('v_readfirstlane_b32 %s, %s' % (sr(sT), vr(vEp)))
    I('s_add_u32 %s, %s, 1' % (sr(sSpin), sr(sSpin)))
    I('s_cmp_lg_u32 %s, 0' % sr(sT))
    I('s_cbranch_scc1 L_ep_ok_%s' % role)
    I('s_cmp_lt_u32 %s, 0x100000' % sr(sSpin))
    I('s_cbranch_scc1 L_ep_loop_%s' % role)
    e.restore(st)
    e.label('L_ep_ok_%s' % role, flush=True)
    I('v_mul_f32 %s, %s, %s' % (vr(vG0), sr(sLog2e), vr(aGt)))
    I('v_exp_f32_e64 %s, -%s' % (vr(vG0), vr(vG0)))
    I('v_add_f32 %s, 1.0, %s' % (vr(vG0), vr(vG0)))
    I('v_rcp_f32 %s, %s' % (vr(vG0), vr(vG0)))
    I('v_and_b32 v122, 15, %s' % vr(vLane))
    I('v_lshlrev_b32 v122, 2, v122')
    I('s_lshl_b32 %s, %s, 6' % (sr(t0), sr(sW)))
    I('s_add_u32 %s, %s, %d' % (sr(t0), sr(t0), GS))
    I('v_add_u32 v122, %s, v122' % sr(t0))
    I('ds_write_b32 v122, %s' % vr(vG0))
    I('v_xor_b32 v123, 64, v122')
    I('v_sub_f32 %s, 1.0, %s' % (vr(vOm0), vr(vG0)))
    vGp = 31
    I('v_mov_b32 %s, v123' % vr(vGp))
    if KV:
        pk, vf, ones, kvd = vF, vF + 8, vF + 16, vF + 20
        for k in range(4): I('v_mov_b32 %s, 0x3f803f80' % vr(ones + k))
        for nt2 in range(2):
            for mt in range(2):
                phi4(aG0 + (nt2 * 2 + mt) * 4, pk + nt2 * 4 + mt * 2)
                s_ = aG1 + (nt2 * 2 + mt) * 4
                I('v_cvt_pk_bf16_f32 %s, %s, %s' % (vr(vf + nt2 * 4 + mt * 2), vr(s_), vr(s_ + 1)))
                I('v_cvt_pk_bf16_f32 %s, %s, %s' % (vr(vf + nt2 * 4 + mt * 2 + 1), vr(s_ + 2), vr(s_ + 3)))
            mfma(kvd + nt2 * 4, pk + nt2 * 4, vf + nt2 * 4, '0')
            mfma(kvd + 8 + nt2 * 4, pk + nt2 * 4, ones, '0')
        I('s_add_u32 %s, %s, %d' % (sr(t0), sr(sMX), KVB - 4096))
        I('v_add_u32 v122, %s, %s' % (sr(t0), vr(vL16)))
        I('s_lshl_b32 %s, %s, 7' % (sr(t0), sr(sW)))
        I('s_add_u32 %s, %s, %d' % (sr(t0), sr(t0), ZB - 256))
        I('v_lshlrev_b32 v123, 4, v30')
        I('v_add_u32 v123, %s, v123' % sr(t0))
        I('s_cmp_eq_u32 %s, 0' % sr(sA_))
        I('s_cbranch_scc1 L_kv_nowr')
        st = e.save()
        for nt2 in range(2):
            I('ds_write_b128 v122, %s offset:%d' % (vr(kvd + nt2 * 4, 4), nt2 * 1024))
            I('ds_write_b128 v123, %s offset:%d' % (vr(kvd + 8 + nt2 * 4, 4), nt2 * 64))
        e.restore(st)
        e.label('L_kv_nowr', flush=True)
    e.wait_lg_all()
    I('s_barrier')
    I('ds_read_b32 %s, %s' % (vr(vG1), vr(vGp)))
    if KV:
        I('s_cmp_lg_u32 %s, 0' % sr(sA_))
        I('s_cbranch_scc1 L_kv_nopub')
        st = e.save()
        tmp = aG0
        for aa in range(3):
            for nt2 in range(2):
                I('ds_read_b128 %s, v122 offset:%d' % (vr(tmp + (aa * 2 + nt2) * 4, 4), 4096 + aa * 4096 + nt2 * 1024))
        for aa in range(3):
            for nt2 in range(2):
                for k in range(4):
                    I('v_add_f32 %s, %s, %s' % (vr(kvd + nt2 * 4 + k), vr(kvd + nt2 * 4 + k), vr(tmp + (aa * 2 + nt2) * 4 + k)))
        for aa in range(3):
            for nt2 in range(2):
                I('ds_read_b128 %s, v123 offset:%d' % (vr(tmp + (aa * 2 + nt2) * 4, 4), 256 + aa * 256 + nt2 * 64))
        I('s_lshl_b32 %s, %s, 4' % (sr(t0), sr(sV)))
        I('s_add_u32 %s, %s, %s' % (sr(t0), sr(t0), sr(sI)))
        I('s_lshl_b32 %s, %s, 1' % (sr(t0), sr(t0)))
        I('s_add_u32 %s, %s, %s' % (sr(t0), sr(t0), sr(sH2)))
        I('s_lshl_b32 %s, %s, 11' % (sr(t1), sr(t0)))
        I('s_add_u32 %s, %s, 0x%x' % (sr(t1), sr(t1), WS_KVP))
        for nt2 in range(2):
            I('buffer_store_dwordx4 %s, %s, %s, %s offen offset:%d sc1' % (vr(kvd + nt2 * 4, 4), vr(vL16), sr(dWS, 4), sr(t1), nt2 * 1024))
        for aa in range(3):
            for nt2 in range(2):
                for k in range(4):
                    I('v_add_f32 %s, %s, %s' % (vr(kvd + 8 + nt2 * 4 + k), vr(kvd + 8 + nt2 * 4 + k), vr(tmp + (aa * 2 + nt2) * 4 + k)))
        I('s_lshl_b32 %s, %s, 7' % (sr(t1), sr(t0)))
        I('s_add_u32 %s, %s, 0x%x' % (sr(t1), sr(t1), WS_ZP))
        I('v_lshlrev_b32 v124, 4, v30')
        I('s_mov_b32 exec_lo, 0x00010001'); I('s_mov_b32 exec_hi, 0x00010001')
        for nt2 in range(2):
            I('buffer_store_dwordx4 %s, v124, %s, %s offen offset:%d sc1' % (vr(kvd + 8 + nt2 * 4, 4), sr(dWS, 4), sr(t1), nt2 * 64))
        I('s_mov_b64 exec, 1')
        I('s_lshl_b32 %s, %s, 2' % (sr(t1), sr(t0)))
        I('s_add_u32 %s, %s, 0x%x' % (sr(t1), sr(t1), WS_KVF))
        I('v_mov_b32 v125, %s' % sr(sT))
        e.wait_vm_all()
        I('buffer_store_dword v125, v124, %s, %s offen sc1' % (sr(dWS, 4), sr(t1)))
        I('s_mov_b64 exec, -1')
        e.wait_lg_all()
        e.restore(st)
        e.label('L_kv_nopub', flush=True)
    for ls in range(4): slab_dma(ls)
    I('v_sub_f32 %s, 1.0, %s' % (vr(vOm1), vr(vG1)))
    if not KV:
        I('s_lshl_b32 %s, %s, 1' % (sr(t5), sr(sRr)))
        I('s_sub_u32 %s, %s, 2' % (sr(t5), sr(t5)))
        h_step(t5, t3); h_epi(aG0, t3, vF)
        I('s_add_u32 %s, %s, 1' % (sr(t5), sr(t5)))
        h_step(t5, t3); h_epi(aG1, t3, vF + 8)
    stamp()
    aG2, aU = aG0, aGt
    if KV:
        for nt2 in range(2): bias_init([aG2 + (nt2 * 2) * 4, aG2 + (nt2 * 2 + 1) * 4], vBias + nt2 * 2)
    bias_init([aU], vBias + 8)
    for q in range(4):
        e.c('pass2 chunk %d' % q)
        e.wait_vm(('g2', q))
        I('s_barrier')
        if q >= 1: slab_dma(3 + q)
        base = Wa.off(R(G2_REG[q]), 16383)
        def reads(k):
            t, s_ = 2 * q + (k >> 1), k & 1
            fb = vF + 16 + 12 * (k & 1)
            lst = []
            for nt2 in range(2):
                for h in range(2):
                    lst.append('ds_read_b64_tr_b16 %s, %s offset:%d' % (vr(fb + nt2 * 4 + 2 * h, 2), vr(vWa + nt2), base + k * 4096 + h * 2048))
            for h in range(2):
                lst.append('ds_read_b64_tr_b16 %s, %s offset:%d' % (vr(fb + 8 + 2 * h, 2), vr(vUa), t * 2048 + s_ * 1024 + h * 512))
            return lst
        for x in reads(0): I(x)
        for k in range(4):
            t, s_ = 2 * q + (k >> 1), k & 1
            fb = vF + 16 + 12 * (k & 1)
            nxt = reads(k + 1) if k < 3 else []
            ms = []
            for nt2 in range(2):
                for mt in range(2):
                    d = aG2 + (nt2 * 2 + mt) * 4
                    ms.append((d, fb + nt2 * 4, Xf(t, s_, mt), '0' if (q == 0 and k == 0 and not KV) else d))
            ms.append((aU, fb + 8, Xf(t, s_, 0), aU))
            for x in nxt[:2]: I(x)
            for kk_, m in enumerate(ms):
                mfma(*m)
                for x in nxt[2 + kk_ * 2: 4 + kk_ * 2]: I(x)
    I('s_barrier')
    slab_dma(7); slab_dma(8)
    stamp()
    h_vals(aU, vF, vOm0)
    I('s_lshr_b32 %s, %s, 1' % (sr(t0), sr(sJ)))
    I('s_mul_i32 %s, %s, %d' % (sr(t0), sr(t0), 9 * 1024))
    I('s_and_b32 %s, %s, 1' % (sr(t1), sr(sRr)))
    I('s_lshl_b32 %s, %s, 9' % (sr(t1), sr(t1)))
    I('s_add_u32 %s, %s, %s' % (sr(t0), sr(t0), sr(t1)))
    I('s_add_u32 %s, %s, %d' % (sr(t0), sr(t0), 6 * 1024))
    I('s_add_u32 %s, %s, %s' % (sr(t0), sr(t0), sr(sAb)))
    I('buffer_store_dwordx2 %s, %s, %s, %s offen sc1' % (vr(vF, 2), vr(vL8), sr(dWS, 4), sr(t0)))
    if KV:
        h_step(sRr, t3); h_epi(aG2, t3, vF + 4)
    else:
        pq = vF + 4
        for nt2 in range(2):
            for mt in range(2): phi4(aG2 + (nt2 * 2 + mt) * 4, pq + (nt2 * 2 + mt) * 2)
        I('s_lshl_b32 %s, %s, 7' % (sr(t0), sr(sV)))
        I('s_add_u32 %s, %s, 0x%x' % (sr(t0), sr(t0), WS_KVF))
        I('v_lshlrev_b32 v122, 2, %s' % vr(vLane))
        spin('L_kvspin', 'buffer_load_dword %s, v122, %s, %s offen sc1' % (vr(vEp), sr(dWS, 4), sr(t0)), 0xffffffff)
        I('s_lshl_b32 %s, %s, 1' % (sr(t0), sr(sV)))
        I('s_add_u32 %s, %s, %s' % (sr(t0), sr(t0), sr(sH2)))
        I('s_lshl_b32 %s, %s, 5' % (sr(t0), sr(t0)))
        I('s_add_u32 %s, %s, %s' % (sr(t0), sr(t0), sr(sA_)))
        I('s_lshl_b32 %s, %s, 10' % (sr(t1), sr(t0)))
        I('s_add_u32 %s, %s, 0x%x' % (sr(t1), sr(t1), WS_KVP))
        I('s_lshl_b32 %s, %s, 6' % (sr(t2), sr(t0)))
        I('s_add_u32 %s, %s, 0x%x' % (sr(t2), sr(t2), WS_ZP))
        I('v_lshlrev_b32 v124, 4, v30')
        for k in range(8):
            I('buffer_load_dwordx4 %s, %s, %s, %s offen sc1' % (vr(128 + 4 * k, 4), vr(vL16), sr(dWS, 4), sr(t1)))
            if k < 7: I('s_add_u32 %s, %s, 4096' % (sr(t1), sr(t1)))
        for k in range(8):
            I('buffer_load_dwordx4 %s, v124, %s, %s offen offset:%d sc1' % (vr(160 + 4 * k, 4), sr(dWS, 4), sr(t2), k * 256))
        for b_ in (128, 160):
            for k in range(1, 8):
                for c_ in range(4): I('v_add_f32 %s, %s, %s' % (vr(b_ + c_), vr(b_ + c_), vr(b_ + 4 * k + c_)))
        I('s_add_u32 %s, %s, %d' % (sr(t0), sr(sMW), KVB))
        I('v_add_u32 v122, %s, %s' % (sr(t0), vr(vL16)))
        I('ds_write_b128 v122, v[128:131]')
        I('s_lshl_b32 %s, %s, 6' % (sr(t0), sr(sW)))
        I('s_add_u32 %s, %s, %d' % (sr(t0), sr(t0), ZB))
        I('v_add_u32 v123, %s, v124' % sr(t0))
        I('ds_write_b128 v123, v[160:163]')
        I('s_lshl_b32 %s, %s, 12' % (sr(t0), sr(sH2)))
        I('s_add_u32 %s, %s, %d' % (sr(t0), sr(t0), KVB))
        I('v_add_u32 v122, %s, %s' % (sr(t0), vr(vL16)))
        I('s_lshl_b32 %s, %s, 8' % (sr(t0), sr(sH2)))
        I('s_add_u32 %s, %s, %d' % (sr(t0), sr(t0), ZB))
        I('v_add_u32 v123, %s, v124' % sr(t0))
        e.wait_lg_all()
        I('s_barrier')
        for k in range(4):
            I('ds_read_b128 %s, v122 offset:%d' % (vr(128 + 4 * k, 4), k * 1024))
            I('ds_read_b128 %s, v123 offset:%d' % (vr(144 + 4 * k, 4), k * 64))
        kvT = 160
        for nt2 in range(2):
            for which, b_ in ((0, 128), (1, 144)):
                s_ = b_ + nt2 * 8
                for c_ in range(4): I('v_add_f32 %s, %s, %s' % (vr(s_ + c_), vr(s_ + c_), vr(s_ + 4 + c_)))
                I('v_cvt_pk_bf16_f32 %s, %s, %s' % (vr(kvT + nt2 * 4 + which * 2), vr(s_), vr(s_ + 1)))
                I('v_cvt_pk_bf16_f32 %s, %s, %s' % (vr(kvT + nt2 * 4 + which * 2 + 1), vr(s_ + 2), vr(s_ + 3)))
        nd = 168
        for nt2 in range(2):
            for mt in range(2):
                for which in range(2):
                    I('v_mfma_f32_16x16x16_bf16 %s, %s, %s, 0' % (vr(nd + (nt2 * 2 + mt) * 8 + which * 4, 4),
                      vr(kvT + nt2 * 4 + which * 2, 2), vr(pq + (nt2 * 2 + mt) * 2, 2)))
        I('s_and_b32 %s, %s, 3' % (sr(t0), sr(sV)))
        I('s_mul_i32 %s, %s, 9' % (sr(t0), sr(t0)))
        I('s_add_u32 %s, %s, %s' % (sr(t0), sr(t0), sr(sH2)))
        I('s_add_u32 %s, %s, 7' % (sr(t0), sr(t0)))
        I('s_lshl_b32 %s, %s, 10' % (sr(t3), sr(t0)))
        of = 200
        for mt in range(2):
            for nt2 in range(2):
                n_ = nd + (nt2 * 2 + mt) * 8; d_ = n_ + 4
                I('v_add_f32 %s, %s, %s' % (vr(d_), sr(sEps), vr(d_)))
                I('v_rcp_f32 %s, %s' % (vr(d_), vr(d_)))
                I('v_mul_f32 %s, %s, %s' % (vr(d_), vr(d_), vr(vG0 + mt)))
                for c_ in range(4): I('v_mul_f32 %s, %s, %s' % (vr(n_ + c_), vr(n_ + c_), vr(d_)))
                I('v_cvt_pk_bf16_f32 %s, %s, %s' % (vr(of + mt * 4 + nt2 * 2), vr(n_), vr(n_ + 1)))
                I('v_cvt_pk_bf16_f32 %s, %s, %s' % (vr(of + mt * 4 + nt2 * 2 + 1), vr(n_ + 2), vr(n_ + 3)))
            I('s_add_u32 %s, %s, %s' % (sr(t4), sr(sAb + mt), sr(t3)))
            I('buffer_store_dwordx4 %s, %s, %s, %s offen sc1' % (vr(of + mt * 4, 4), vr(vL16), sr(dWS, 4), sr(t4)))
    e.wait_all()

phase1('KV')
I('s_branch L_phase2')
e.restore(st0); nstamp[0] = ns0
e.label('L_roleQ', flush=False)
phase1('Q')
e.label('L_phase2', flush=True)
I('s_barrier')
I('s_lshl_b32 %s, %s, 1' % (sr(t5), sr(sI)))
I('s_add_u32 %s, %s, %s' % (sr(t5), sr(t5), sr(sP)))
I('s_lshl_b32 %s, %s, 7' % (sr(t5), sr(t5)))
I('s_add_u32 %s, %s, 0x%x' % (sr(t5), sr(t5), WS_HF))
I('s_cmp_lg_u32 %s, 0' % sr(sW))
I('s_cbranch_scc1 L_nohf')
st = e.save()
I('s_lshl_b32 %s, %s, 2' % (sr(t0), sr(sJ)))
I('v_mov_b32 v28, %s' % sr(t0))
I('v_mov_b32 v29, %s' % sr(sT))
I('s_mov_b64 exec, 1')
I('buffer_store_dword v29, v28, %s, %s offen sc1' % (sr(dWS, 4), sr(t5)))
I('s_mov_b64 exec, -1')
e.restore(st)
e.label('L_nohf', flush=False)
acc = lambda u, mt: 32 + (u * 2 + mt) * 4
Ar = lambda n, mt: 64 + ((n % 6) * 2 + mt) * 4
Bf = lambda ls, u: 112 + (ls * 4 + u) * 4
vBa = 4; vA1 = 8; vA2 = 9; vAs = 10; vRw = 11; vRr = 14; vOo = 15; vB2 = 16; vOmf = 18
I('v_lshrrev_b32 v20, 2, %s' % vr(vLane))
I('v_bfe_u32 v21, %s, 3, 2' % vr(vLane))
I('v_and_b32 v22, 3, %s' % vr(vLane))
I('v_lshlrev_b32 v22, 3, v22')
I('v_lshl_add_u32 v22, v20, 7, v22')
I('v_lshl_add_u32 v22, v21, 5, v22')
I('s_lshl_b32 %s, %s, 12' % (sr(t0), sr(sA_)))
I('v_add_u32 v22, %s, v22' % sr(t0))
for u in range(4):
    I('s_add_u32 %s, %s, %d' % (sr(t0), sr(sA_), u))
    I('s_and_b32 %s, %s, 3' % (sr(t0), sr(t0)))
    I('s_lshl_b32 %s, %s, 5' % (sr(t1), sr(t0)))
    I('v_xor_b32 %s, %s, v22' % (vr(vBa + u), sr(t1)))
    I('s_lshl_b32 %s, %s, 2' % (sr(t1), sr(sH2)))
    I('s_add_u32 %s, %s, %s' % (sr(t1), sr(t1), sr(t0)))
    I('s_mul_i32 %s, %s, 6144' % (sr(t1), sr(t1)))
    if u == 0: I('v_add_u32 %s, %s, %s' % (vr(vRr), sr(t1), vr(vL16)))
    else:
        I('s_add_u32 %s, %s, %d' % (sr(t1), sr(t1), (u - 1) * 2048))
        I('v_add_u32 %s, %s, %s' % (vr(vRw + u - 1), sr(t1), vr(vL16)))
Ba = LdsAddr([vBa + u for u in range(4)], 0)
for ls in sorted(range(9), key=lambda x: SLAB_REG[x]):
    base = Ba.off(R(SLAB_REG[ls]), 4095)
    for u in range(4):
        for h in range(2):
            I('ds_read_b64_tr_b16 %s, %s offset:%d' % (vr(Bf(ls, u) + 2 * h, 2), vr(vBa + u), base + h * 2048))
I('v_add_u32 %s, 0x1000, %s' % (vr(vA1), vr(vL16)))
I('v_add_u32 %s, 0x2000, %s' % (vr(vA2), vr(vL16)))
I('v_add_u32 %s, 0x1800, %s' % (vr(vAs), vr(vL8)))
I('v_and_b32 v20, 15, %s' % vr(vLane))
I('v_lshrrev_b32 v21, 4, %s' % vr(vLane))
I('s_lshl_b32 %s, %s, 1' % (sr(t0), sr(sP)))
I('s_add_u32 %s, %s, %s' % (sr(t0), sr(t0), sr(sH2)))
I('s_lshl_b32 %s, %s, 5' % (sr(t0), sr(t0)))
I('v_add_u32 v20, %s, v20' % sr(t0))
I('v_lshlrev_b32 v22, 2, v20')
I('v_add_u32 v22, %d, v22' % GS)
I('ds_read_b32 %s, v22' % vr(vOmf))
I('ds_read_b32 %s, v22 offset:64' % vr(vOmf + 1))
I('s_lshl_b32 %s, %s, 2' % (sr(t0), sr(sJ)))
I('s_add_u32 %s, %s, %s' % (sr(t0), sr(t0), sr(sA_)))
I('s_lshl_b32 %s, %s, 5' % (sr(t0), sr(t0)))
I('v_lshlrev_b32 v21, 3, v21')
I('v_add_u32 v21, %s, v21' % sr(t0))
I('global_load_dwordx2 %s, v21, %s' % (vr(vB2, 2), sr(pB2, 2)))
I('s_lshl_b32 %s, %s, 17' % (sr(t0), sr(sI)))
I('v_lshl_add_u32 %s, v20, 10, v21' % vr(vOo))
I('v_add_u32 %s, %s, %s' % (vr(vOo), sr(t0), vr(vOo)))
e.wait_lg_all()
for mt in range(2): I('v_sub_f32 %s, 1.0, %s' % (vr(vOmf + mt), vr(vOmf + mt)))
I('s_barrier')
I('v_lshlrev_b32 v20, 2, %s' % vr(vLane))
spin('L_hspin', 'buffer_load_dword %s, v20, %s, %s offen sc1' % (vr(vEp), sr(dWS, 4), sr(t5)), 0xff)
stamp()

def a_load(n):
    ps, ls = divmod(n, 9)
    for mt in range(2):
        so = sr(sA2 + ps * 2 + mt); d = Ar(n, mt)
        if ls == 6:
            I('buffer_load_dwordx2 %s, %s, %s, %s offen sc1' % (vr(d, 2), vr(vAs), sr(dWS, 4), so))
            I('buffer_load_dwordx2 %s, %s, %s, %s offen offset:512 sc1' % (vr(d + 2, 2), vr(vAs), sr(dWS, 4), so))
        else:
            va = (vL16, vA1, vA2)[ls // 4]
            I('buffer_load_dwordx4 %s, %s, %s, %s offen offset:%d sc1' % (vr(d, 4), vr(va), sr(dWS, 4), so, (ls % 4) * 1024))

def reduce_lds(area):
    for u in range(1, 4):
        for mt in range(2):
            I('ds_write_b128 %s, %s offset:%d' % (vr(vRw + u - 1), vr(acc(u, mt), 4), area + mt * 1024))
    e.wait_lg_all()
    I('s_barrier')
    for u in range(1, 4):
        for mt in range(2):
            I('ds_read_b128 %s, %s offset:%d' % (vr(acc(u, mt), 4), vr(vRr), area + (u - 1) * 2048 + mt * 1024))
    for u in range(1, 4):
        for mt in range(2):
            for c_ in range(4): I('v_add_f32 %s, %s, %s' % (vr(acc(0, mt) + c_), vr(acc(0, mt) + c_), vr(acc(u, mt) + c_)))

for n in range(6): a_load(n)
I('s_lshl_b32 %s, s2, 14' % sr(t0))
I('s_add_u32 %s, %s, %s' % (sr(t0), sr(t0), sr(sMX)))
I('s_add_u32 %s, %s, 0x%x' % (sr(t3), sr(t0), WS_EX))
I('s_xor_b32 %s, %s, 0x4000' % (sr(t4), sr(t3)))
I('s_lshl_b32 %s, s2, 7' % sr(t0))
I('s_lshl_b32 %s, %s, 2' % (sr(t1), sr(sW)))
I('s_add_u32 %s, %s, %s' % (sr(t0), sr(t0), sr(t1)))
I('s_add_u32 %s, %s, 0x%x' % (sr(t2), sr(t0), WS_XF))
I('s_xor_b32 %s, %s, 0x80' % (sr(t5), sr(t2)))
I('v_mov_b32 v20, 0')
I('v_mov_b32 v21, %s' % sr(sT))
for n in range(18):
    ps, ls = divmod(n, 9)
    for mt in range(2):
        for u in range(4):
            mfma(acc(u, mt), Bf(ls, u), Ar(n, mt), '0' if ls == 0 else acc(u, mt))
    if n + 6 < 18: a_load(n + 6)
    if n == 8:
        reduce_lds(0)
        for mt in range(2):
            I('buffer_store_dwordx4 %s, %s, %s, %s offen offset:%d sc1' % (vr(acc(0, mt), 4), vr(vL16), sr(dWS, 4), sr(t3), mt * 1024), 'ex')
    if n == 16:
        e.wait_vm_all()
        I('s_mov_b64 exec, 1')
        I('buffer_store_dword v21, v20, %s, %s offen sc1' % (sr(dWS, 4), sr(t2)))
        I('s_mov_b64 exec, -1')
reduce_lds(49152)
spin('L_xspin', 'buffer_load_dword %s, v20, %s, %s offen sc1' % (vr(vEp), sr(dWS, 4), sr(t5)), 1)
for mt in range(2):
    I('buffer_load_dwordx4 %s, %s, %s, %s offen offset:%d sc1' % (vr(64 + mt * 4, 4), vr(vL16), sr(dWS, 4), sr(t4), mt * 1024))
bias_init([72], vB2)
I('s_mov_b32 %s, 0x4000' % sr(t0))
for mt in range(2):
    for c_ in range(4): I('v_fma_f32 %s, %s, %s, %s' % (vr(acc(0, mt) + c_), vr(72 + c_), vr(vOmf + mt), vr(acc(0, mt) + c_)))
for mt in range(2):
    for c_ in range(4): I('v_add_f32 %s, %s, %s' % (vr(acc(0, mt) + c_), vr(acc(0, mt) + c_), vr(64 + mt * 4 + c_)))
    I('v_cvt_pk_bf16_f32 %s, %s, %s' % (vr(76 + mt * 2), vr(acc(0, mt)), vr(acc(0, mt) + 1)))
    I('v_cvt_pk_bf16_f32 %s, %s, %s' % (vr(77 + mt * 2), vr(acc(0, mt) + 2), vr(acc(0, mt) + 3)))
    I('buffer_store_dwordx2 %s, %s, %s, %s offen' % (vr(76 + mt * 2, 2), vr(vOo), sr(dOUT, 4), '0' if mt == 0 else sr(t0)))
if PROF:
    e.wait_vm_all()
    stamp()
    I('s_cmp_lg_u32 %s, 0' % sr(sW))
    I('s_cbranch_scc1 L_end')
    for k in range(nstamp[0]): I('v_writelane_b32 v28, %s, %d' % (sr(sStamp + 2 * k), k))
    I('s_getreg_b32 %s, hwreg(HW_REG_XCC_ID)' % sr(t0))
    I('v_writelane_b32 v28, %s, 7' % sr(t0))
    I('s_lshl_b32 %s, s2, 5' % sr(t0))
    I('s_add_u32 %s, %s, 0x%x' % (sr(t0), sr(t0), WS_PROF))
    I('v_lshlrev_b32 v29, 2, %s' % vr(vLane))
    I('s_mov_b64 exec, 0xff')
    I('buffer_store_dword v28, v29, %s, %s offen' % (sr(dWS, 4), sr(t0)))
e.label('L_end', flush=False)
I('s_endpgm')

hdr = open('cdna_kernels/%s.s.ref' % NAME).read().split('; Override launch')[0]
src = hdr + '; @launch grid=(256,1,1) block=(512,1,1) lds=163840\n'
src += '.amdgcn_target "amdgcn-amd-amdhsa--gfx950"\n.text\n.globl %s_kernel\n.p2align 8\n.type %s_kernel,@function\n%s_kernel:\n' % (NAME, NAME, NAME)
src += e.text()
src += '''.section .rodata,"a"
.p2align 6
.amdhsa_kernel %s_kernel
  .amdhsa_next_free_vgpr 256
  .amdhsa_next_free_sgpr 102
  .amdhsa_accum_offset 256
  .amdhsa_group_segment_fixed_size 0
  .amdhsa_kernarg_size 96
  .amdhsa_user_sgpr_count 2
  .amdhsa_user_sgpr_kernarg_segment_ptr 1
  .amdhsa_system_sgpr_workgroup_id_x 1
.end_amdhsa_kernel
''' % NAME
open(OUT, 'w').write(src)
print('wrote', OUT, 'instrs', e.ninstr, 'nops', e.nop_count)
```

```python
import sys
from asmlib import Em, vr, sr

NAME = 'gated_mix__linear_attn_block__dense_activation_squared_relu__prompt'
PROF = '--prof' in sys.argv
OUT = [a for a in sys.argv[1:] if not a.startswith('--')]
OUT = OUT[0] if OUT else 'cdna_kernels/%s.s' % NAME

R = lambda k: k * 16384
GATE = R(9); GS = R(9) + 1024; ZB = R(9) + 1536; KVB = R(9) + 4096
WS_KVF = 0x1000; WS_HF = 0x2000; WS_XF = 0x4000; WS_PROF = 0x10000
WS_KVP = 0x100000; WS_ZP = 0x180000; WS_EX = 0x200000; WS_AB = 0x800000
P_QKV = 3072; P_W1 = 3584
LOG2E = 0x3fb8aa3b; EPS = 0x358637bd

sB_, sW, sP, sI, sJ, sC, sRr, sRot, sA_, sH2, sT = 2, 3, 4, 5, 6, 7, 8, 9, 10, 11, 12
t0, t1, t2 = 13, 14, 15
pX, pQKV, pWO, pBX, pW1, pB1, pW2, pB2, pG, pOUT, pDBG, pWS = 16, 18, 20, 22, 24, 26, 28, 30, 32, 34, 36, 38
dX, dQKV, dW1, dW2, dWO, dWS, dOUT = 40, 44, 48, 52, 56, 60, 64
sMX, sMW, sV, sHB = 68, 69, 70, 71
sAb = 72
sSl = 74
t3, t4, t5 = 77, 78, 79
sA2 = 80
sLog2e, sEps = 84, 85
sSpin = 86
sStamp = 88

vLane, vL16, vL8 = 1, 2, 3
vXa = 4; vWa = 12; vGa = 14; vUa = 15; vXo = 16; vAo = 18; vBo = 19; vUo = 20; vSo = 22
vG0, vG1, vOm0, vOm1, vEp = 23, 24, 25, 26, 27
vt = 28
vBias = 32
aG0, aG1, aGt = 44, 60, 76
vF = 80
vT2 = 120
Xf = lambda t, s, mt: 128 + ((t * 2 + s) * 2 + mt) * 4

e = Em()
I = e.i
nstamp = [0]
def stamp():
    if not PROF: return
    k = nstamp[0]; nstamp[0] += 1
    assert k < 7
    e.wait_lg_all()
    I('s_memrealtime %s' % sr(sStamp + 2 * k, 2))
    e.wait_lg_all()

class LdsAddr:
    def __init__(s, regs, base): s.regs = regs; s.base = base
    def off(s, addr, span=0):
        o = addr - s.base
        if o < 0 or o + span > 65535:
            for r_ in s.regs: I('v_add_u32 %s, %d, %s' % (vr(r_), addr - s.base, vr(r_)))
            s.base = addr; o = 0
        return o

def srd(d, p, nbytes):
    I('s_mov_b32 %s, %s' % (sr(d), sr(p)))
    I('s_and_b32 %s, %s, 0xffff' % (sr(d + 1), sr(p + 1)))
    I('s_mov_b32 %s, 0x%x' % (sr(d + 2), nbytes))
    I('s_mov_b32 %s, 0x20000' % sr(d + 3))

def dma(voff, d, soff, m0base, m0const, tag):
    I('s_add_u32 m0, %s, %d' % (sr(m0base), m0const))
    I('buffer_load_dwordx4 %s, %s, %s offen lds' % (vr(voff), sr(d, 4), soff), tag)

def kc_of(t, dst):
    I('s_add_u32 %s, %s, %d' % (sr(dst), sr(sRot), t))
    I('s_and_b32 %s, %s, 7' % (sr(dst), sr(dst)))

def mfma(d, a, b, c):
    I('v_mfma_f32_16x16x32_bf16 %s, %s, %s, %s' % (vr(d, 4), vr(a, 4), vr(b, 4), c if isinstance(c, str) else vr(c, 4)))

def spin(label, load, nl_mask_lo, nl_mask_hi=0):
    I('s_mov_b32 %s, 0' % sr(sSpin))
    I('s_mov_b32 exec_lo, 0x%x' % nl_mask_lo); I('s_mov_b32 exec_hi, 0x%x' % nl_mask_hi)
    e.label(label, flush=False)
    I(load)
    e.wait_vm_all()
    I('v_cmp_ne_u32 vcc, %s, %s' % (sr(sT), vr(vEp)))
    I('s_add_u32 %s, %s, 1' % (sr(sSpin), sr(sSpin)))
    I('s_cbranch_vccz %s_done' % label)
    I('s_cmp_lt_u32 %s, 0x100000' % sr(sSpin))
    I('s_sleep 1')
    I('s_cbranch_scc1 %s' % label)
    e.label(label + '_done', flush=False)
    I('s_mov_b64 exec, -1')

I('s_cmp_ge_u32 s2, 256')
I('s_cbranch_scc1 L_end')
I('s_load_dwordx16 s[16:31], s[0:1], 0')
I('s_load_dwordx8 s[32:39], s[0:1], 64')
if PROF:
    I('s_memrealtime %s' % sr(sStamp, 2)); nstamp[0] = 1
I('v_lshrrev_b32 v28, 6, v0')
I('v_and_b32 %s, 63, v0' % vr(vLane))
I('v_readfirstlane_b32 %s, v28' % sr(sW))
I('s_and_b32 %s, s2, 1' % sr(sP))
I('s_bfe_u32 %s, s2, 0x20001' % sr(t0))
I('s_lshr_b32 %s, s2, 6' % sr(t1))
I('s_lshl_b32 %s, %s, 2' % (sr(sI), sr(t0)))
I('s_add_u32 %s, %s, %s' % (sr(sI), sr(sI), sr(t1)))
I('s_bfe_u32 %s, s2, 0x30003' % sr(sJ))
I('s_lshr_b32 %s, %s, 2' % (sr(sC), sr(sJ)))
I('s_and_b32 %s, %s, 3' % (sr(sRr), sr(sJ)))
I('s_lshl_b32 %s, %s, 1' % (sr(t1), sr(t1)))
I('s_add_u32 %s, %s, %s' % (sr(sRot), sr(sJ), sr(t1)))
I('s_and_b32 %s, %s, 7' % (sr(sRot), sr(sRot)))
I('s_lshr_b32 %s, %s, 1' % (sr(sA_), sr(sW)))
I('s_and_b32 %s, %s, 1' % (sr(sH2), sr(sW)))
I('s_lshl_b32 %s, %s, 11' % (sr(sMX), sr(sW)))
I('s_lshl_b32 %s, %s, 10' % (sr(sMW), sr(sW)))
I('s_lshl_b32 %s, %s, 1' % (sr(t0), sr(sP)))
I('s_add_u32 %s, %s, %s' % (sr(t0), sr(t0), sr(sC)))
I('s_mul_i32 %s, %s, 7' % (sr(sHB), sr(t0)))
I('s_lshl_b32 %s, %s, 1' % (sr(sV), sr(t0)))
I('s_and_b32 %s, %s, 1' % (sr(t1), sr(sRr)))
I('s_add_u32 %s, %s, %s' % (sr(sV), sr(sV), sr(t1)))
I('s_mov_b32 %s, 0x%x' % (sr(sLog2e), LOG2E))
I('s_mov_b32 %s, 0x%x' % (sr(sEps), EPS))
I('v_lshrrev_b32 v28, 3, %s' % vr(vLane))
I('v_and_b32 v29, 7, %s' % vr(vLane))
I('v_lshrrev_b32 v30, 4, %s' % vr(vLane))
I('v_lshlrev_b32 %s, 4, %s' % (vr(vL16), vr(vLane)))
I('v_lshlrev_b32 %s, 3, %s' % (vr(vL8), vr(vLane)))
I('s_lshl_b32 %s, %s, 3' % (sr(t0), sr(sI)))
I('s_add_u32 %s, %s, %s' % (sr(t0), sr(t0), sr(sW)))
I('s_lshl_b32 %s, %s, 14' % (sr(t0), sr(t0)))
I('v_xor_b32 v31, v29, v30')
I('v_lshlrev_b32 v31, 4, v31')
I('v_lshl_add_u32 v31, v28, 10, v31')
I('v_add_u32 %s, %s, v31' % (vr(vXo), sr(t0)))
I('v_xor_b32 %s, 64, %s' % (vr(vXo + 1), vr(vXo)))
I('v_add_u32 %s, 0x2000, %s' % (vr(vXo + 1), vr(vXo + 1)))
I('v_lshlrev_b32 v120, 1, v30')
I('v_xor_b32 v120, v29, v120')
I('v_lshlrev_b32 v120, 4, v120')
I('s_lshl_b32 %s, %s, 3' % (sr(t0), sr(sW)))
I('v_add_u32 v121, %s, v28' % sr(t0))
e.wait_lg_all()
I('s_or_b32 %s, s2, %s' % (sr(t0), sr(sW)))
I('s_cmp_eq_u32 %s, 0' % sr(t0))
I('v_mov_b32 v123, 0')
I('s_cselect_b64 exec, 1, 0')
I('global_load_dword %s, v123, %s sc0 sc1' % (vr(vEp), sr(pWS, 2)))
I('s_mov_b64 exec, -1')
srd(dX, pX, 2048 * 1024)
srd(dQKV, pQKV, 512 * P_QKV)
srd(dW1, pW1, 512 * P_W1)

def x_dma(t):
    kc_of(t, t3)
    I('s_lshl_b32 %s, %s, 7' % (sr(t4), sr(t3)))
    dma(vXo, dX, sr(t4), sMX, R(t % 3), ('c', t))
    dma(vXo + 1, dX, sr(t4), sMX, R(t % 3) + 1024, ('c', t))
x_dma(0)
I('s_cmp_ge_u32 %s, 2' % sr(sRr))
I('s_cbranch_scc1 L_roleQ')
st0 = e.save(); ns0 = nstamp[0]

SLAB_REG = [0, 1, 3, 4, 6, 7, 2, 5, 8]
G2_REG = [6, 7, 2, 5]

def common_setup():
    srd(dW2, pW2, 1792 * 1024); srd(dWO, pWO, 512 * 1024); srd(dWS, pWS, 0x10000000); srd(dOUT, pOUT, 2048 * 1024)
    I('s_or_b32 %s, s2, %s' % (sr(t0), sr(sW)))
    I('s_cmp_lg_u32 %s, 0' % sr(t0))
    lab = 'L_noep%d' % len(e.lines)
    I('s_cbranch_scc1 %s' % lab)
    st = e.save()
    I('v_add_u32 v122, 1, %s' % vr(vEp))
    I('v_or_b32 v122, 1, v122')
    I('s_mov_b64 exec, 1')
    I('global_store_dword v123, v122, %s sc1' % sr(pDBG, 2))
    I('global_store_dword v123, v122, %s sc1' % sr(pWS, 2))
    I('s_mov_b64 exec, -1')
    e.restore(st)
    e.label(lab, flush=False)
    I('v_and_b32 v122, 15, %s' % vr(vLane))
    I('v_lshrrev_b32 v123, 1, v122')
    I('v_lshrrev_b32 v124, 1, v30')
    I('v_xor_b32 v123, v123, v124')
    I('v_lshlrev_b32 v123, 4, v123')
    I('v_lshl_add_u32 v123, v122, 7, v123')
    I('v_and_b32 v124, 1, v30')
    I('v_lshl_add_u32 v123, v124, 3, v123')
    I('v_add_u32 %s, %s, v123' % (vr(vXa), sr(sMX)))
    for k in (1, 2, 3): I('v_xor_b32 %s, %d, %s' % (vr(vXa + k), k * 32, vr(vXa)))
    for k in range(4): I('v_xor_b32 %s, 0x800, %s' % (vr(vXa + 4 + k), vr(vXa + k)))
    I('v_lshrrev_b32 v122, 2, %s' % vr(vLane))
    I('v_and_b32 v123, 3, v28')
    I('v_and_b32 v124, 3, %s' % vr(vLane))
    I('v_lshlrev_b32 v124, 3, v124')
    I('v_lshl_add_u32 %s, v122, 5, v124' % vr(vUa))
    I('v_add_u32 %s, %d, %s' % (vr(vUa), R(8), vr(vUa)))
    I('v_lshl_add_u32 v125, v122, 7, v124')
    I('v_lshl_add_u32 v125, v123, 5, v125')
    I('s_lshl_b32 %s, %s, 6' % (sr(t0), sr(sH2)))
    I('v_xor_b32 v125, %s, v125' % sr(t0))
    I('v_add_u32 %s, %d, v125' % (vr(vWa), R(3)))
    I('v_xor_b32 %s, 32, %s' % (vr(vWa + 1), vr(vWa)))
    I('v_lshlrev_b32 %s, 3, v30' % vr(vGa))
    I('v_add_u32 %s, %d, %s' % (vr(vGa), GATE, vr(vGa)))
    I('s_lshl_b32 %s, %s, 6' % (sr(t0), sr(sRot)))
    I('s_lshl_b32 %s, %s, 5' % (sr(t1), sr(sW)))
    I('s_add_u32 %s, %s, %s' % (sr(t0), sr(t0), sr(t1)))
    I('v_lshrrev_b32 v122, 1, %s' % vr(vLane))
    I('v_add_u32 v122, %s, v122' % sr(t0))
    I('v_and_b32 v123, 0x1ff, v122')
    I('v_xor_b32 v124, 0x100, v123')
    I('s_add_u32 %s, %s, 6' % (sr(t0), sr(sHB)))
    I('s_lshl_b32 %s, %s, 7' % (sr(t0), sr(t0)))
    I('s_lshl_b32 %s, %s, 5' % (sr(t1), sr(sRr)))
    I('s_add_u32 %s, %s, %s' % (sr(t5), sr(t0), sr(t1)))
    I('v_and_b32 v125, 1, %s' % vr(vLane))
    I('v_lshlrev_b32 v125, 4, v125')
    I('v_add_u32 v125, %s, v125' % sr(t5))
    I('s_movk_i32 %s, %d' % (sr(t0), P_W1))
    I('v_mad_u32_u24 %s, v123, %s, v125' % (vr(vUo), sr(t0)))
    I('v_mad_u32_u24 %s, v124, %s, v125' % (vr(vUo + 1), sr(t0)))
    I('v_lshlrev_b32 v126, 3, v30')
    I('v_add_u32 v122, %s, v126' % sr(t5))
    I('global_load_dwordx2 %s, v122, %s' % (vr(vBias + 8, 2), sr(pB1, 2)))
    I('s_lshl_b32 %s, %s, 14' % (sr(t0), sr(sH2)))
    I('s_lshl_b32 %s, %s, 7' % (sr(t1), sr(sJ)))
    I('s_add_u32 %s, %s, %s' % (sr(t0), sr(t0), sr(t1)))
    I('v_lshl_add_u32 %s, v28, 10, v120' % vr(vSo))
    I('v_add_u32 %s, %s, %s' % (vr(vSo), sr(t0), vr(vSo)))
    I('s_lshr_b32 %s, %s, 1' % (sr(t0), sr(sA_)))
    I('s_lshl_b32 %s, %s, 1' % (sr(t1), sr(sP)))
    I('s_add_u32 %s, %s, %s' % (sr(t0), sr(t0), sr(t1)))
    I('s_mul_i32 %s, %s, 7' % (sr(t0), sr(t0)))
    I('s_and_b32 %s, %s, 1' % (sr(t1), sr(sA_)))
    I('s_mul_i32 %s, %s, 3' % (sr(t2), sr(t1)))
    I('s_add_u32 %s, %s, %s' % (sr(t2), sr(t2), sr(t0)))
    I('s_lshl_b32 %s, %s, 16' % (sr(sSl), sr(t2)))
    I('s_add_u32 %s, %s, 6' % (sr(t0), sr(t0)))
    I('s_lshl_b32 %s, %s, 16' % (sr(t0), sr(t0)))
    I('s_lshl_b32 %s, %s, 15' % (sr(t1), sr(t1)))
    I('s_add_u32 %s, %s, %s' % (sr(sSl + 1), sr(t0), sr(t1)))
    I('s_lshl_b32 %s, %s, 2' % (sr(t0), sr(sP)))
    I('s_add_u32 %s, %s, %s' % (sr(t0), sr(t0), sr(sA_)))
    I('s_lshl_b32 %s, %s, 16' % (sr(sSl + 2), sr(t0)))
    I('s_lshl_b32 %s, %s, 4' % (sr(t0), sr(sP)))
    I('s_add_u32 %s, %s, %s' % (sr(t0), sr(t0), sr(sI)))
    I('s_lshl_b32 %s, %s, 3' % (sr(t0), sr(t0)))
    I('s_add_u32 %s, %s, %s' % (sr(t1), sr(t0), sr(sW)))
    I('s_xor_b32 %s, %s, 1' % (sr(t2), sr(t1)))
    I('s_mul_i32 %s, %s, %d' % (sr(t1), sr(t1), 36 * 1024))
    I('s_mul_i32 %s, %s, %d' % (sr(t2), sr(t2), 36 * 1024))
    I('s_add_u32 %s, %s, 0x%x' % (sr(sAb), sr(t1), WS_AB))
    I('s_add_u32 %s, %s, 0x%x' % (sr(sAb + 1), sr(t2), WS_AB))
    I('s_lshl_b32 %s, %s, 1' % (sr(t1), sr(sH2)))
    I('s_add_u32 %s, %s, %s' % (sr(t0), sr(t0), sr(t1)))
    I('s_lshl_b32 %s, %s, 2' % (sr(t1), sr(sP)))
    I('s_add_u32 %s, %s, %s' % (sr(t0), sr(t0), sr(t1)))
    I('s_xor_b32 %s, %s, 4' % (sr(t1), sr(t0)))
    I('s_mul_i32 %s, %s, %d' % (sr(t2), sr(sA_), 9 * 1024))
    I('s_add_u32 %s, %s, 0x%x' % (sr(t2), sr(t2), WS_AB))
    I('s_mul_i32 %s, %s, %d' % (sr(t0), sr(t0), 36 * 1024))
    I('s_mul_i32 %s, %s, %d' % (sr(t1), sr(t1), 36 * 1024))
    I('s_add_u32 %s, %s, %s' % (sr(sA2), sr(t1), sr(t2)))
    I('s_add_u32 %s, %s, %d' % (sr(sA2 + 1), sr(sA2), 36 * 1024))
    I('s_add_u32 %s, %s, %s' % (sr(sA2 + 2), sr(t0), sr(t2)))
    I('s_add_u32 %s, %s, %d' % (sr(sA2 + 3), sr(sA2 + 2), 36 * 1024))

def bias_init(acc_regs, pk):
    for a_ in acc_regs:
        I('v_lshlrev_b32 %s, 16, %s' % (vr(a_), vr(pk)))
        I('v_and_b32 %s, 0xffff0000, %s' % (vr(a_ + 1), vr(pk)))
        I('v_lshlrev_b32 %s, 16, %s' % (vr(a_ + 2), vr(pk + 1)))
        I('v_and_b32 %s, 0xffff0000, %s' % (vr(a_ + 3), vr(pk + 1)))

def slab_dma(ls):
    if ls < 6: base, d, add = sSl, dW2, ls * 32768
    elif ls == 6: base, d, add = sSl + 1, dW2, 0
    else: base, d, add = sSl + 2, dWO, (ls - 7) * 32768
    for ee in range(2):
        I('s_add_u32 %s, %s, %d' % (sr(t4), sr(base), add + ee * 8192))
        dma(vSo, d, sr(t4), sMX, R(SLAB_REG[ls]) + ee * 1024, 'slab')

def h_vals(src, dst2, om):
    for k in range(4): I('v_max_f32 %s, 0, %s' % (vr(src + k), vr(src + k)))
    for k in range(4): I('v_mul_f32 %s, %s, %s' % (vr(vT2 + k), vr(src + k), vr(om)))
    for k in range(4): I('v_mul_f32 %s, %s, %s' % (vr(src + k), vr(src + k), vr(vT2 + k)))
    I('v_cvt_pk_bf16_f32 %s, %s, %s' % (vr(dst2), vr(src), vr(src + 1)))
    I('v_cvt_pk_bf16_f32 %s, %s, %s' % (vr(dst2 + 1), vr(src + 2), vr(src + 3)))

def h_epi(acc, step_sgpr, fbuf):
    for mt in range(2):
        f = fbuf + 4 * mt
        for nt2 in range(2): h_vals(acc + (nt2 * 2 + mt) * 4, f + 2 * nt2, vOm0 + mt)
        I('s_add_u32 %s, %s, %s' % (sr(t4), sr(sAb + mt), sr(step_sgpr)))
        I('buffer_store_dwordx4 %s, %s, %s, %s offen sc1' % (vr(f, 4), vr(vL16), sr(dWS, 4), sr(t4)))

def h_step(q_sgpr, dst):
    I('s_cmp_ge_u32 %s, 3' % sr(q_sgpr))
    I('s_cselect_b32 %s, 3, 0' % sr(t0))
    I('s_lshl_b32 %s, %s, 1' % (sr(t1), sr(q_sgpr)))
    I('s_add_u32 %s, %s, %s' % (sr(t0), sr(t0), sr(t1)))
    I('s_add_u32 %s, %s, %s' % (sr(t0), sr(t0), sr(sH2)))
    I('s_mul_i32 %s, %s, 18' % (sr(t1), sr(sC)))
    I('s_add_u32 %s, %s, %s' % (sr(t0), sr(t0), sr(t1)))
    I('s_lshl_b32 %s, %s, 10' % (sr(dst), sr(t0)))

def phi4(src, dst2):
    for k in range(4): I('v_mul_f32 %s, %s, %s' % (vr(vT2 + k), sr(sLog2e), vr(src + k)))
    for k in range(4): I('v_exp_f32_e64 %s, %s clamp' % (vr(vT2 + k), vr(vT2 + k)))
    for k in range(4): I('v_max_f32 %s, 0, %s' % (vr(src + k), vr(src + k)))
    for k in range(4): I('v_add_f32 %s, %s, %s' % (vr(src + k), vr(src + k), vr(vT2 + k)))
    for k in range(4): I('v_add_f32 %s, %s, %s' % (vr(src + k), sr(sEps), vr(src + k)))
    I('v_cvt_pk_bf16_f32 %s, %s, %s' % (vr(dst2), vr(src), vr(src + 1)))
    I('v_cvt_pk_bf16_f32 %s, %s, %s' % (vr(dst2 + 1), vr(src + 2), vr(src + 3)))

def phase1(role):
    KV = role == 'KV'
    dA, pitchA, dB, pitchB = (dQKV, P_QKV, dW1, P_W1) if KV else (dW1, P_W1, dQKV, P_QKV)
    g1add = 1024 if KV else 128
    if KV:
        I('s_lshl_b32 %s, %s, 7' % (sr(t0), sr(sV)))
        I('s_add_u32 %s, %s, 1024' % (sr(t0), sr(t0)))
        I('s_add_u32 %s, %s, %s' % (sr(t1), sr(sHB), sr(sRr)))
        I('s_lshl_b32 %s, %s, 7' % (sr(t1), sr(t1)))
    else:
        I('s_lshl_b32 %s, %s, 1' % (sr(t0), sr(sRr)))
        I('s_add_u32 %s, %s, %s' % (sr(t0), sr(t0), sr(sHB)))
        I('s_sub_u32 %s, %s, 2' % (sr(t0), sr(t0)))
        I('s_lshl_b32 %s, %s, 7' % (sr(t0), sr(t0)))
        I('s_lshl_b32 %s, %s, 7' % (sr(t1), sr(sV)))
    I('s_movk_i32 %s, %d' % (sr(t2), pitchA))
    I('v_mad_u32_u24 %s, v121, %s, v120' % (vr(vAo), sr(t2)))
    I('v_add_u32 %s, %s, %s' % (vr(vAo), sr(t0), vr(vAo)))
    def w_dma(t):
        I('s_mul_i32 %s, %s, %d' % (sr(t4), sr(t3), 64 * pitchA))
        dma(vAo, dA, sr(t4), sMW, R(3 + t % 3), ('c', t))
        I('s_add_u32 %s, %s, %d' % (sr(t4), sr(t4), g1add))
        dma(vAo, dA, sr(t4), sMW, R(3 + t % 3) + 8192, ('c', t))
    w_dma(0)
    I('s_lshl_b32 %s, %s, 7' % (sr(t4), sr(sRot)))
    I('v_add_u32 v122, %s, %s' % (sr(t4), vr(vL16)))
    I('v_and_b32 v122, 0x3ff, v122')
    I('s_mov_b32 m0, %d' % GATE)
    I('global_load_lds_dwordx4 v122, %s' % sr(pG, 2), ('c', 0))
    I('s_lshl_b32 %s, %s, 6' % (sr(t4), sr(sH2)))
    I('s_add_u32 %s, %s, %s' % (sr(t4), sr(t4), sr(t1 if KV else t0)))
    I('v_lshlrev_b32 v122, 3, v30')
    I('v_add_u32 v122, %s, v122' % sr(t4))
    for k in range(2 if KV else 4):
        I('global_load_dwordx2 %s, v122, %s offset:%d' % (vr(vBias + 2 * k, 2), sr(pB1, 2), (k & 1) * 32 + (k >> 1) * 128))
    I('s_movk_i32 %s, %d' % (sr(t2), pitchB))
    I('v_mad_u32_u24 %s, v121, %s, v120' % (vr(vBo), sr(t2)))
    I('v_add_u32 %s, %s, %s' % (vr(vBo), sr(t1), vr(vBo)))
    x_dma(1); w_dma(1)
    common_setup()
    def g2_dma(q):
        for tt in (2 * q, 2 * q + 1):
            kc_of(tt, t3)
            I('s_mul_i32 %s, %s, %d' % (sr(t4), sr(t3), 64 * pitchB))
            dma(vBo, dB, sr(t4), sMW, R(G2_REG[q]) + (tt & 1) * 8192, ('g2', q))
    if not KV:
        for grp, a_ in ((0, aG0), (1, aG1)):
            for nt2 in range(2): bias_init([a_ + (nt2 * 2) * 4, a_ + (nt2 * 2 + 1) * 4], vBias + (grp * 2 + nt2) * 2)
    Wa = LdsAddr([vWa, vWa + 1], R(3))
    for t in range(8):
        e.c('pass1 chunk %d' % t)
        e.wait_vm(('c', t))
        I('s_barrier')
        if t == 0: stamp()
        def reads(s_):
            fb = vF + 20 * s_
            lst = []
            def xr(mt):
                for h in range(2):
                    lst.append('ds_read_b64 %s, %s offset:%d' % (vr(Xf(t, s_, mt) + 2 * h, 2), vr(vXa + mt * 4 + 2 * s_ + h), R(t % 3)))
            def wr(grp, nt2):
                for h in range(2):
                    lst.append('ds_read_b64_tr_b16 %s, %s offset:%d' % (vr(fb + (grp * 2 + nt2) * 4 + 2 * h, 2), vr(vWa + nt2),
                               R(t % 3) + grp * 8192 + s_ * 4096 + h * 2048))
            xr(0); wr(0, 0); xr(1); wr(0, 1); wr(1, 0); wr(1, 1)
            for h in range(2):
                lst.append('ds_read_b64 %s, %s offset:%d' % (vr(fb + 16 + 2 * h, 2), vr(vGa), t * 128 + s_ * 64 + h * 32))
            return lst
        def mms(s_):
            fb = vF + 20 * s_
            lst = []
            first = (t == 0 and s_ == 0)
            for grp, a_ in ((0, aG0), (1, aG1)):
                for nt2 in range(2):
                    for mt in range(2):
                        d = a_ + (nt2 * 2 + mt) * 4; w_ = fb + (grp * 2 + nt2) * 4; x_ = Xf(t, s_, mt)
                        c_ = '0' if (first and KV) else d
                        lst.append((d, x_, w_, c_) if KV else (d, w_, x_, c_))
            lst.append((aGt, fb + 16, Xf(t, s_, 0), '0' if first else aGt))
            return lst
        for x in reads(0): I(x)
        if t + 2 < 8: x_dma(t + 2); w_dma(t + 2)
        elif t == 6:
            g2_dma(0)
            for ee in range(2): dma(vUo + ee, dW1, '0', sMW, R(8) + ee * 8192, ('g2', 0))
            g2_dma(1)
        else:
            g2_dma(2); g2_dma(3)
        if t == 4:
            I('v_mov_b32 v122, 0')
            I('global_load_dword %s, v122, %s sc1' % (vr(vEp), sr(pDBG, 2)))
        r1 = reads(1); m0 = mms(0)
        for k, m in enumerate(m0):
            mfma(*m)
            for x in r1[k * 2:k * 2 + 2]: I(x)
        for m in mms(1): mfma(*m)
    stamp()
    I('v_readfirstlane_b32 %s, %s' % (sr(sT), vr(vEp)))
    I('s_cmp_lg_u32 %s, 0' % sr(sT))
    I('s_cbranch_scc1 L_ep_ok_%s' % role)
    st = e.save()
    I('s_mov_b32 %s, 0' % sr(sSpin))
    e.label('L_ep_loop_%s' % role, flush=False)
    I('global_load_dword %s, v122, %s sc1' % (vr(vEp), sr(pDBG, 2)))
    e.wait_vm_all()
    I('v_readfirstlane_b32 %s, %s' % (sr(sT), vr(vEp)))
    I('s_add_u32 %s, %s, 1' % (sr(sSpin), sr(sSpin)))
    I('s_cmp_lg_u32 %s, 0' % sr(sT))
    I('s_cbranch_scc1 L_ep_ok_%s' % role)
    I('s_cmp_lt_u32 %s, 0x100000' % sr(sSpin))
    I('s_cbranch_scc1 L_ep_loop_%s' % role)
    e.restore(st)
    e.label('L_ep_ok_%s' % role, flush=True)
    I('v_mul_f32 %s, %s, %s' % (vr(vG0), sr(sLog2e), vr(aGt)))
    I('v_exp_f32_e64 %s, -%s' % (vr(vG0), vr(vG0)))
    I('v_add_f32 %s, 1.0, %s' % (vr(vG0), vr(vG0)))
    I('v_rcp_f32 %s, %s' % (vr(vG0), vr(vG0)))
    I('v_and_b32 v122, 15, %s' % vr(vLane))
    I('v_lshlrev_b32 v122, 2, v122')
    I('s_lshl_b32 %s, %s, 6' % (sr(t0), sr(sW)))
    I('s_add_u32 %s, %s, %d' % (sr(t0), sr(t0), GS))
    I('v_add_u32 v122, %s, v122' % sr(t0))
    I('ds_write_b32 v122, %s' % vr(vG0))
    I('v_xor_b32 v123, 64, v122')
    I('v_sub_f32 %s, 1.0, %s' % (vr(vOm0), vr(vG0)))
    vGp = 31
    I('v_mov_b32 %s, v123' % vr(vGp))
    if KV:
        pk, vf, ones, kvd = vF, vF + 8, vF + 16, vF + 20
        for k in range(4): I('v_mov_b32 %s, 0x3f803f80' % vr(ones + k))
        for nt2 in range(2):
            for mt in range(2):
                phi4(aG0 + (nt2 * 2 + mt) * 4, pk + nt2 * 4 + mt * 2)
                s_ = aG1 + (nt2 * 2 + mt) * 4
                I('v_cvt_pk_bf16_f32 %s, %s, %s' % (vr(vf + nt2 * 4 + mt * 2), vr(s_), vr(s_ + 1)))
                I('v_cvt_pk_bf16_f32 %s, %s, %s' % (vr(vf + nt2 * 4 + mt * 2 + 1), vr(s_ + 2), vr(s_ + 3)))
            mfma(kvd + nt2 * 4, pk + nt2 * 4, vf + nt2 * 4, '0')
            mfma(kvd + 8 + nt2 * 4, pk + nt2 * 4, ones, '0')
        I('s_add_u32 %s, %s, %d' % (sr(t0), sr(sMX), KVB - 4096))
        I('v_add_u32 v122, %s, %s' % (sr(t0), vr(vL16)))
        I('s_lshl_b32 %s, %s, 7' % (sr(t0), sr(sW)))
        I('s_add_u32 %s, %s, %d' % (sr(t0), sr(t0), ZB - 256))
        I('v_lshlrev_b32 v123, 4, v30')
        I('v_add_u32 v123, %s, v123' % sr(t0))
        I('s_cmp_eq_u32 %s, 0' % sr(sA_))
        I('s_cbranch_scc1 L_kv_nowr')
        st = e.save()
        for nt2 in range(2):
            I('ds_write_b128 v122, %s offset:%d' % (vr(kvd + nt2 * 4, 4), nt2 * 1024))
            I('ds_write_b128 v123, %s offset:%d' % (vr(kvd + 8 + nt2 * 4, 4), nt2 * 64))
        e.restore(st)
        e.label('L_kv_nowr', flush=True)
    e.wait_lg_all()
    I('s_barrier')
    I('ds_read_b32 %s, %s' % (vr(vG1), vr(vGp)))
    if KV:
        I('s_cmp_lg_u32 %s, 0' % sr(sA_))
        I('s_cbranch_scc1 L_kv_nopub')
        st = e.save()
        tmp = aG0
        for aa in range(3):
            for nt2 in range(2):
                I('ds_read_b128 %s, v122 offset:%d' % (vr(tmp + (aa * 2 + nt2) * 4, 4), 4096 + aa * 4096 + nt2 * 1024))
        for aa in range(3):
            for nt2 in range(2):
                for k in range(4):
                    I('v_add_f32 %s, %s, %s' % (vr(kvd + nt2 * 4 + k), vr(kvd + nt2 * 4 + k), vr(tmp + (aa * 2 + nt2) * 4 + k)))
        for aa in range(3):
            for nt2 in range(2):
                I('ds_read_b128 %s, v123 offset:%d' % (vr(tmp + (aa * 2 + nt2) * 4, 4), 256 + aa * 256 + nt2 * 64))
        I('s_lshl_b32 %s, %s, 4' % (sr(t0), sr(sV)))
        I('s_add_u32 %s, %s, %s' % (sr(t0), sr(t0), sr(sI)))
        I('s_lshl_b32 %s, %s, 1' % (sr(t0), sr(t0)))
        I('s_add_u32 %s, %s, %s' % (sr(t0), sr(t0), sr(sH2)))
        I('s_lshl_b32 %s, %s, 11' % (sr(t1), sr(t0)))
        I('s_add_u32 %s, %s, 0x%x' % (sr(t1), sr(t1), WS_KVP))
        for nt2 in range(2):
            I('buffer_store_dwordx4 %s, %s, %s, %s offen offset:%d sc1' % (vr(kvd + nt2 * 4, 4), vr(vL16), sr(dWS, 4), sr(t1), nt2 * 1024))
        for aa in range(3):
            for nt2 in range(2):
                for k in range(4):
                    I('v_add_f32 %s, %s, %s' % (vr(kvd + 8 + nt2 * 4 + k), vr(kvd + 8 + nt2 * 4 + k), vr(tmp + (aa * 2 + nt2) * 4 + k)))
        I('s_lshl_b32 %s, %s, 7' % (sr(t1), sr(t0)))
        I('s_add_u32 %s, %s, 0x%x' % (sr(t1), sr(t1), WS_ZP))
        I('v_lshlrev_b32 v124, 4, v30')
        I('s_mov_b32 exec_lo, 0x00010001'); I('s_mov_b32 exec_hi, 0x00010001')
        for nt2 in range(2):
            I('buffer_store_dwordx4 %s, v124, %s, %s offen offset:%d sc1' % (vr(kvd + 8 + nt2 * 4, 4), sr(dWS, 4), sr(t1), nt2 * 64))
        I('s_mov_b64 exec, 1')
        I('s_lshl_b32 %s, %s, 2' % (sr(t1), sr(t0)))
        I('s_add_u32 %s, %s, 0x%x' % (sr(t1), sr(t1), WS_KVF))
        I('v_mov_b32 v125, %s' % sr(sT))
        e.wait_vm_all()
        I('buffer_store_dword v125, v124, %s, %s offen sc1' % (sr(dWS, 4), sr(t1)))
        I('s_mov_b64 exec, -1')
        e.wait_lg_all()
        e.restore(st)
        e.label('L_kv_nopub', flush=True)
    for ls in range(4): slab_dma(ls)
    I('v_sub_f32 %s, 1.0, %s' % (vr(vOm1), vr(vG1)))
    if not KV:
        I('s_lshl_b32 %s, %s, 1' % (sr(t5), sr(sRr)))
        I('s_sub_u32 %s, %s, 2' % (sr(t5), sr(t5)))
        h_step(t5, t3); h_epi(aG0, t3, vF)
        I('s_add_u32 %s, %s, 1' % (sr(t5), sr(t5)))
        h_step(t5, t3); h_epi(aG1, t3, vF + 8)
    stamp()
    aG2, aU = aG0, aGt
    if KV:
        for nt2 in range(2): bias_init([aG2 + (nt2 * 2) * 4, aG2 + (nt2 * 2 + 1) * 4], vBias + nt2 * 2)
    bias_init([aU], vBias + 8)
    for q in range(4):
        e.c('pass2 chunk %d' % q)
        e.wait_vm(('g2', q))
        I('s_barrier')
        if q >= 1: slab_dma(3 + q)
        base = Wa.off(R(G2_REG[q]), 16383)
        def reads(k):
            t, s_ = 2 * q + (k >> 1), k & 1
            fb = vF + 16 + 12 * (k & 1)
            lst = []
            for nt2 in range(2):
                for h in range(2):
                    lst.append('ds_read_b64_tr_b16 %s, %s offset:%d' % (vr(fb + nt2 * 4 + 2 * h, 2), vr(vWa + nt2), base + k * 4096 + h * 2048))
            for h in range(2):
                lst.append('ds_read_b64_tr_b16 %s, %s offset:%d' % (vr(fb + 8 + 2 * h, 2), vr(vUa), t * 2048 + s_ * 1024 + h * 512))
            return lst
        for x in reads(0): I(x)
        for k in range(4):
            t, s_ = 2 * q + (k >> 1), k & 1
            fb = vF + 16 + 12 * (k & 1)
            nxt = reads(k + 1) if k < 3 else []
            ms = []
            for nt2 in range(2):
                for mt in range(2):
                    d = aG2 + (nt2 * 2 + mt) * 4
                    ms.append((d, fb + nt2 * 4, Xf(t, s_, mt), '0' if (q == 0 and k == 0 and not KV) else d))
            ms.append((aU, fb + 8, Xf(t, s_, 0), aU))
            for x in nxt[:2]: I(x)
            for kk_, m in enumerate(ms):
                mfma(*m)
                for x in nxt[2 + kk_ * 2: 4 + kk_ * 2]: I(x)
    I('s_barrier')
    slab_dma(7); slab_dma(8)
    stamp()
    h_vals(aU, vF, vOm0)
    I('s_lshr_b32 %s, %s, 1' % (sr(t0), sr(sJ)))
    I('s_mul_i32 %s, %s, %d' % (sr(t0), sr(t0), 9 * 1024))
    I('s_and_b32 %s, %s, 1' % (sr(t1), sr(sRr)))
    I('s_lshl_b32 %s, %s, 9' % (sr(t1), sr(t1)))
    I('s_add_u32 %s, %s, %s' % (sr(t0), sr(t0), sr(t1)))
    I('s_add_u32 %s, %s, %d' % (sr(t0), sr(t0), 6 * 1024))
    I('s_add_u32 %s, %s, %s' % (sr(t0), sr(t0), sr(sAb)))
    I('buffer_store_dwordx2 %s, %s, %s, %s offen sc1' % (vr(vF, 2), vr(vL8), sr(dWS, 4), sr(t0)))
    if KV:
        h_step(sRr, t3); h_epi(aG2, t3, vF + 4)
    else:
        pq = vF + 4
        for nt2 in range(2):
            for mt in range(2): phi4(aG2 + (nt2 * 2 + mt) * 4, pq + (nt2 * 2 + mt) * 2)
        I('s_lshl_b32 %s, %s, 7' % (sr(t0), sr(sV)))
        I('s_add_u32 %s, %s, 0x%x' % (sr(t0), sr(t0), WS_KVF))
        I('v_lshlrev_b32 v122, 2, %s' % vr(vLane))
        spin('L_kvspin', 'buffer_load_dword %s, v122, %s, %s offen sc1' % (vr(vEp), sr(dWS, 4), sr(t0)), 0xffffffff)
        I('s_lshl_b32 %s, %s, 1' % (sr(t0), sr(sV)))
        I('s_add_u32 %s, %s, %s' % (sr(t0), sr(t0), sr(sH2)))
        I('s_lshl_b32 %s, %s, 5' % (sr(t0), sr(t0)))
        I('s_add_u32 %s, %s, %s' % (sr(t0), sr(t0), sr(sA_)))
        I('s_lshl_b32 %s, %s, 10' % (sr(t1), sr(t0)))
        I('s_add_u32 %s, %s, 0x%x' % (sr(t1), sr(t1), WS_KVP))
        I('s_lshl_b32 %s, %s, 6' % (sr(t2), sr(t0)))
        I('s_add_u32 %s, %s, 0x%x' % (sr(t2), sr(t2), WS_ZP))
        I('v_lshlrev_b32 v124, 4, v30')
        for k in range(8):
            I('buffer_load_dwordx4 %s, %s, %s, %s offen sc1' % (vr(128 + 4 * k, 4), vr(vL16), sr(dWS, 4), sr(t1)))
            if k < 7: I('s_add_u32 %s, %s, 4096' % (sr(t1), sr(t1)))
        for k in range(8):
            I('buffer_load_dwordx4 %s, v124, %s, %s offen offset:%d sc1' % (vr(160 + 4 * k, 4), sr(dWS, 4), sr(t2), k * 256))
        for b_ in (128, 160):
            for k in range(1, 8):
                for c_ in range(4): I('v_add_f32 %s, %s, %s' % (vr(b_ + c_), vr(b_ + c_), vr(b_ + 4 * k + c_)))
        I('s_add_u32 %s, %s, %d' % (sr(t0), sr(sMW), KVB))
        I('v_add_u32 v122, %s, %s' % (sr(t0), vr(vL16)))
        I('ds_write_b128 v122, v[128:131]')
        I('s_lshl_b32 %s, %s, 6' % (sr(t0), sr(sW)))
        I('s_add_u32 %s, %s, %d' % (sr(t0), sr(t0), ZB))
        I('v_add_u32 v123, %s, v124' % sr(t0))
        I('ds_write_b128 v123, v[160:163]')
        I('s_lshl_b32 %s, %s, 12' % (sr(t0), sr(sH2)))
        I('s_add_u32 %s, %s, %d' % (sr(t0), sr(t0), KVB))
        I('v_add_u32 v122, %s, %s' % (sr(t0), vr(vL16)))
        I('s_lshl_b32 %s, %s, 8' % (sr(t0), sr(sH2)))
        I('s_add_u32 %s, %s, %d' % (sr(t0), sr(t0), ZB))
        I('v_add_u32 v123, %s, v124' % sr(t0))
        e.wait_lg_all()
        I('s_barrier')
        for k in range(4):
            I('ds_read_b128 %s, v122 offset:%d' % (vr(128 + 4 * k, 4), k * 1024))
            I('ds_read_b128 %s, v123 offset:%d' % (vr(144 + 4 * k, 4), k * 64))
        kvT = 160
        for nt2 in range(2):
            for which, b_ in ((0, 128), (1, 144)):
                s_ = b_ + nt2 * 8
                for c_ in range(4): I('v_add_f32 %s, %s, %s' % (vr(s_ + c_), vr(s_ + c_), vr(s_ + 4 + c_)))
                I('v_cvt_pk_bf16_f32 %s, %s, %s' % (vr(kvT + nt2 * 4 + which * 2), vr(s_), vr(s_ + 1)))
                I('v_cvt_pk_bf16_f32 %s, %s, %s' % (vr(kvT + nt2 * 4 + which * 2 + 1), vr(s_ + 2), vr(s_ + 3)))
        nd = 168
        for nt2 in range(2):
            for mt in range(2):
                for which in range(2):
                    I('v_mfma_f32_16x16x16_bf16 %s, %s, %s, 0' % (vr(nd + (nt2 * 2 + mt) * 8 + which * 4, 4),
                      vr(kvT + nt2 * 4 + which * 2, 2), vr(pq + (nt2 * 2 + mt) * 2, 2)))
        I('s_and_b32 %s, %s, 3' % (sr(t0), sr(sV)))
        I('s_mul_i32 %s, %s, 9' % (sr(t0), sr(t0)))
        I('s_add_u32 %s, %s, %s' % (sr(t0), sr(t0), sr(sH2)))
        I('s_add_u32 %s, %s, 7' % (sr(t0), sr(t0)))
        I('s_lshl_b32 %s, %s, 10' % (sr(t3), sr(t0)))
        of = 200
        for mt in range(2):
            for nt2 in range(2):
                n_ = nd + (nt2 * 2 + mt) * 8; d_ = n_ + 4
                I('v_add_f32 %s, %s, %s' % (vr(d_), sr(sEps), vr(d_)))
                I('v_rcp_f32 %s, %s' % (vr(d_), vr(d_)))
                I('v_mul_f32 %s, %s, %s' % (vr(d_), vr(d_), vr(vG0 + mt)))
                for c_ in range(4): I('v_mul_f32 %s, %s, %s' % (vr(n_ + c_), vr(n_ + c_), vr(d_)))
                I('v_cvt_pk_bf16_f32 %s, %s, %s' % (vr(of + mt * 4 + nt2 * 2), vr(n_), vr(n_ + 1)))
                I('v_cvt_pk_bf16_f32 %s, %s, %s' % (vr(of + mt * 4 + nt2 * 2 + 1), vr(n_ + 2), vr(n_ + 3)))
            I('s_add_u32 %s, %s, %s' % (sr(t4), sr(sAb + mt), sr(t3)))
            I('buffer_store_dwordx4 %s, %s, %s, %s offen sc1' % (vr(of + mt * 4, 4), vr(vL16), sr(dWS, 4), sr(t4)))
    e.wait_all()

phase1('KV')
I('s_branch L_phase2')
e.restore(st0); nstamp[0] = ns0
e.label('L_roleQ', flush=False)
phase1('Q')
e.label('L_phase2', flush=True)
I('s_barrier')
I('s_lshl_b32 %s, %s, 1' % (sr(t5), sr(sI)))
I('s_add_u32 %s, %s, %s' % (sr(t5), sr(t5), sr(sP)))
I('s_lshl_b32 %s, %s, 7' % (sr(t5), sr(t5)))
I('s_add_u32 %s, %s, 0x%x' % (sr(t5), sr(t5), WS_HF))
I('s_cmp_lg_u32 %s, 0' % sr(sW))
I('s_cbranch_scc1 L_nohf')
st = e.save()
I('s_lshl_b32 %s, %s, 2' % (sr(t0), sr(sJ)))
I('v_mov_b32 v28, %s' % sr(t0))
I('v_mov_b32 v29, %s' % sr(sT))
I('s_mov_b64 exec, 1')
I('buffer_store_dword v29, v28, %s, %s offen sc1' % (sr(dWS, 4), sr(t5)))
I('s_mov_b64 exec, -1')
e.restore(st)
e.label('L_nohf', flush=False)
acc = lambda u, mt: 32 + (u * 2 + mt) * 4
Ar = lambda n, mt: 64 + ((n % 6) * 2 + mt) * 4
Bf = lambda ls, u: 112 + (ls * 4 + u) * 4
vBa = 4; vA1 = 8; vA2 = 9; vAs = 10; vRw = 11; vRr = 14; vOo = 15; vB2 = 16; vOmf = 18
I('v_lshrrev_b32 v20, 2, %s' % vr(vLane))
I('v_bfe_u32 v21, %s, 3, 2' % vr(vLane))
I('v_and_b32 v22, 3, %s' % vr(vLane))
I('v_lshlrev_b32 v22, 3, v22')
I('v_lshl_add_u32 v22, v20, 7, v22')
I('v_lshl_add_u32 v22, v21, 5, v22')
I('s_lshl_b32 %s, %s, 12' % (sr(t0), sr(sA_)))
I('v_add_u32 v22, %s, v22' % sr(t0))
for u in range(4):
    I('s_add_u32 %s, %s, %d' % (sr(t0), sr(sA_), u))
    I('s_and_b32 %s, %s, 3' % (sr(t0), sr(t0)))
    I('s_lshl_b32 %s, %s, 5' % (sr(t1), sr(t0)))
    I('v_xor_b32 %s, %s, v22' % (vr(vBa + u), sr(t1)))
    I('s_lshl_b32 %s, %s, 2' % (sr(t1), sr(sH2)))
    I('s_add_u32 %s, %s, %s' % (sr(t1), sr(t1), sr(t0)))
    I('s_mul_i32 %s, %s, 6144' % (sr(t1), sr(t1)))
    if u == 0: I('v_add_u32 %s, %s, %s' % (vr(vRr), sr(t1), vr(vL16)))
    else:
        I('s_add_u32 %s, %s, %d' % (sr(t1), sr(t1), (u - 1) * 2048))
        I('v_add_u32 %s, %s, %s' % (vr(vRw + u - 1), sr(t1), vr(vL16)))
Ba = LdsAddr([vBa + u for u in range(4)], 0)
for ls in sorted(range(9), key=lambda x: SLAB_REG[x]):
    base = Ba.off(R(SLAB_REG[ls]), 4095)
    for u in range(4):
        for h in range(2):
            I('ds_read_b64_tr_b16 %s, %s offset:%d' % (vr(Bf(ls, u) + 2 * h, 2), vr(vBa + u), base + h * 2048))
I('v_add_u32 %s, 0x1000, %s' % (vr(vA1), vr(vL16)))
I('v_add_u32 %s, 0x2000, %s' % (vr(vA2), vr(vL16)))
I('v_add_u32 %s, 0x1800, %s' % (vr(vAs), vr(vL8)))
I('v_and_b32 v20, 15, %s' % vr(vLane))
I('v_lshrrev_b32 v21, 4, %s' % vr(vLane))
I('s_lshl_b32 %s, %s, 1' % (sr(t0), sr(sP)))
I('s_add_u32 %s, %s, %s' % (sr(t0), sr(t0), sr(sH2)))
I('s_lshl_b32 %s, %s, 5' % (sr(t0), sr(t0)))
I('v_add_u32 v20, %s, v20' % sr(t0))
I('v_lshlrev_b32 v22, 2, v20')
I('v_add_u32 v22, %d, v22' % GS)
I('ds_read_b32 %s, v22' % vr(vOmf))
I('ds_read_b32 %s, v22 offset:64' % vr(vOmf + 1))
I('s_lshl_b32 %s, %s, 2' % (sr(t0), sr(sJ)))
I('s_add_u32 %s, %s, %s' % (sr(t0), sr(t0), sr(sA_)))
I('s_lshl_b32 %s, %s, 5' % (sr(t0), sr(t0)))
I('v_lshlrev_b32 v21, 3, v21')
I('v_add_u32 v21, %s, v21' % sr(t0))
I('global_load_dwordx2 %s, v21, %s' % (vr(vB2, 2), sr(pB2, 2)))
I('s_lshl_b32 %s, %s, 17' % (sr(t0), sr(sI)))
I('v_lshl_add_u32 %s, v20, 10, v21' % vr(vOo))
I('v_add_u32 %s, %s, %s' % (vr(vOo), sr(t0), vr(vOo)))
e.wait_lg_all()
for mt in range(2): I('v_sub_f32 %s, 1.0, %s' % (vr(vOmf + mt), vr(vOmf + mt)))
I('s_barrier')
I('v_lshlrev_b32 v20, 2, %s' % vr(vLane))
spin('L_hspin', 'buffer_load_dword %s, v20, %s, %s offen sc1' % (vr(vEp), sr(dWS, 4), sr(t5)), 0xff)
stamp()

def a_load(n):
    ps, ls = divmod(n, 9)
    for mt in range(2):
        so = sr(sA2 + ps * 2 + mt); d = Ar(n, mt)
        if ls == 6:
            I('buffer_load_dwordx2 %s, %s, %s, %s offen sc1' % (vr(d, 2), vr(vAs), sr(dWS, 4), so))
            I('buffer_load_dwordx2 %s, %s, %s, %s offen offset:512 sc1' % (vr(d + 2, 2), vr(vAs), sr(dWS, 4), so))
        else:
            va = (vL16, vA1, vA2)[ls // 4]
            I('buffer_load_dwordx4 %s, %s, %s, %s offen offset:%d sc1' % (vr(d, 4), vr(va), sr(dWS, 4), so, (ls % 4) * 1024))

def reduce_lds(area):
    for u in range(1, 4):
        for mt in range(2):
            I('ds_write_b128 %s, %s offset:%d' % (vr(vRw + u - 1), vr(acc(u, mt), 4), area + mt * 1024))
    e.wait_lg_all()
    I('s_barrier')
    for u in range(1, 4):
        for mt in range(2):
            I('ds_read_b128 %s, %s offset:%d' % (vr(acc(u, mt), 4), vr(vRr), area + (u - 1) * 2048 + mt * 1024))
    for u in range(1, 4):
        for mt in range(2):
            for c_ in range(4): I('v_add_f32 %s, %s, %s' % (vr(acc(0, mt) + c_), vr(acc(0, mt) + c_), vr(acc(u, mt) + c_)))

for n in range(6): a_load(n)
I('s_lshl_b32 %s, s2, 14' % sr(t0))
I('s_add_u32 %s, %s, %s' % (sr(t0), sr(t0), sr(sMX)))
I('s_add_u32 %s, %s, 0x%x' % (sr(t3), sr(t0), WS_EX))
I('s_xor_b32 %s, %s, 0x4000' % (sr(t4), sr(t3)))
I('s_lshl_b32 %s, s2, 7' % sr(t0))
I('s_lshl_b32 %s, %s, 2' % (sr(t1), sr(sW)))
I('s_add_u32 %s, %s, %s' % (sr(t0), sr(t0), sr(t1)))
I('s_add_u32 %s, %s, 0x%x' % (sr(t2), sr(t0), WS_XF))
I('s_xor_b32 %s, %s, 0x80' % (sr(t5), sr(t2)))
I('v_mov_b32 v20, 0')
I('v_mov_b32 v21, %s' % sr(sT))
for n in range(18):
    ps, ls = divmod(n, 9)
    for mt in range(2):
        for u in range(4):
            mfma(acc(u, mt), Bf(ls, u), Ar(n, mt), '0' if ls == 0 else acc(u, mt))
    if n + 6 < 18: a_load(n + 6)
    if n == 8:
        reduce_lds(0)
        for mt in range(2):
            I('buffer_store_dwordx4 %s, %s, %s, %s offen offset:%d sc1' % (vr(acc(0, mt), 4), vr(vL16), sr(dWS, 4), sr(t3), mt * 1024), 'ex')
    if n == 16:
        e.wait_vm_all()
        I('s_mov_b64 exec, 1')
        I('buffer_store_dword v21, v20, %s, %s offen sc1' % (sr(dWS, 4), sr(t2)))
        I('s_mov_b64 exec, -1')
reduce_lds(49152)
spin('L_xspin', 'buffer_load_dword %s, v20, %s, %s offen sc1' % (vr(vEp), sr(dWS, 4), sr(t5)), 1)
for mt in range(2):
    I('buffer_load_dwordx4 %s, %s, %s, %s offen offset:%d sc1' % (vr(64 + mt * 4, 4), vr(vL16), sr(dWS, 4), sr(t4), mt * 1024))
bias_init([72], vB2)
I('s_mov_b32 %s, 0x4000' % sr(t0))
for mt in range(2):
    for c_ in range(4): I('v_fma_f32 %s, %s, %s, %s' % (vr(acc(0, mt) + c_), vr(72 + c_), vr(vOmf + mt), vr(acc(0, mt) + c_)))
for mt in range(2):
    for c_ in range(4): I('v_add_f32 %s, %s, %s' % (vr(acc(0, mt) + c_), vr(acc(0, mt) + c_), vr(64 + mt * 4 + c_)))
    I('v_cvt_pk_bf16_f32 %s, %s, %s' % (vr(76 + mt * 2), vr(acc(0, mt)), vr(acc(0, mt) + 1)))
    I('v_cvt_pk_bf16_f32 %s, %s, %s' % (vr(77 + mt * 2), vr(acc(0, mt) + 2), vr(acc(0, mt) + 3)))
    I('buffer_store_dwordx2 %s, %s, %s, %s offen' % (vr(76 + mt * 2, 2), vr(vOo), sr(dOUT, 4), '0' if mt == 0 else sr(t0)))
if PROF:
    e.wait_vm_all()
    stamp()
    I('s_cmp_lg_u32 %s, 0' % sr(sW))
    I('s_cbranch_scc1 L_end')
    for k in range(nstamp[0]): I('v_writelane_b32 v28, %s, %d' % (sr(sStamp + 2 * k), k))
    I('s_getreg_b32 %s, hwreg(HW_REG_XCC_ID)' % sr(t0))
    I('v_writelane_b32 v28, %s, 7' % sr(t0))
    I('s_lshl_b32 %s, s2, 5' % sr(t0))
    I('s_add_u32 %s, %s, 0x%x' % (sr(t0), sr(t0), WS_PROF))
    I('v_lshlrev_b32 v29, 2, %s' % vr(vLane))
    I('s_mov_b64 exec, 0xff')
    I('buffer_store_dword v28, v29, %s, %s offen' % (sr(dWS, 4), sr(t0)))
    I('s_not_b32 %s, %s' % (sr(t0), sr(sStamp)))
    I('s_nop 1')
    I('v_writelane_b32 v28, %s, 7' % sr(t0))
    e.raw('    global_atomic_umax v29, v28, %s offset:4' % sr(pDBG, 2))
e.label('L_end', flush=False)
I('s_endpgm')

hdr = open('cdna_kernels/%s.s.ref' % NAME).read().split('; Override launch')[0]
src = hdr + '; @launch grid=(256,1,1) block=(512,1,1) lds=163840\n'
src += '.amdgcn_target "amdgcn-amd-amdhsa--gfx950"\n.text\n.globl %s_kernel\n.p2align 8\n.type %s_kernel,@function\n%s_kernel:\n' % (NAME, NAME, NAME)
src += e.text()
src += '''.section .rodata,"a"
.p2align 6
.amdhsa_kernel %s_kernel
  .amdhsa_next_free_vgpr 256
  .amdhsa_next_free_sgpr 102
  .amdhsa_accum_offset 256
  .amdhsa_group_segment_fixed_size 0
  .amdhsa_kernarg_size 96
  .amdhsa_user_sgpr_count 2
  .amdhsa_user_sgpr_kernarg_segment_ptr 1
  .amdhsa_system_sgpr_workgroup_id_x 1
.end_amdhsa_kernel
''' % NAME
open(OUT, 'w').write(src)
print('wrote', OUT, 'instrs', e.ninstr, 'nops', e.nop_count)
```

```python
import re, copy

TRANS = ('v_exp_f32', 'v_rcp_f32', 'v_log_f32', 'v_rsq_f32', 'v_sqrt_f32', 'v_sin_f32', 'v_cos_f32')
NODST_S = ('s_cmp', 's_cbranch', 's_waitcnt', 's_barrier', 's_nop', 's_sleep', 's_setprio', 's_branch',
           's_endpgm', 's_bitcmp')

def regs_of(op):
    op = op.strip()
    op = op.lstrip('-')
    m = re.fullmatch(r'abs\((.*)\)', op)
    if m: op = m.group(1)
    m = re.fullmatch(r'\|(.*)\|', op)
    if m: op = m.group(1)
    m = re.fullmatch(r'v(\d+)', op)
    if m: return {int(m.group(1))}, set()
    m = re.fullmatch(r'v\[(\d+):(\d+)\]', op)
    if m: return set(range(int(m.group(1)), int(m.group(2)) + 1)), set()
    m = re.fullmatch(r's(\d+)', op)
    if m: return set(), {int(m.group(1))}
    m = re.fullmatch(r's\[(\d+):(\d+)\]', op)
    if m: return set(), set(range(int(m.group(1)), int(m.group(2)) + 1))
    if op in ('vcc', 'vcc_lo', 'vcc_hi'): return set(), {'vcc'}
    if op in ('exec', 'exec_lo', 'exec_hi'): return set(), {'exec'}
    if op == 'm0': return set(), {'m0'}
    return set(), set()

class Rec:
    __slots__ = ('kind', 'vw', 'vr', 'sw', 'sr', 'a', 'b', 'c', 'sdata', 'trans', 'mn', 'ws', 'lanerd', 'dma')
    def __init__(s):
        s.kind = 'other'; s.vw = set(); s.vr = set(); s.sw = set(); s.sr = set()
        s.a = set(); s.b = set(); s.c = set(); s.sdata = set(); s.trans = False; s.mn = ''; s.ws = 1
        s.lanerd = False; s.dma = False

def parse(text):
    t = text.split(';')[0].strip()
    mn, _, rest = t.partition(' ')
    rest = re.sub(r'\b(op_sel|op_sel_hi|neg_lo|neg_hi):\[[^\]]*\]', '', rest)
    parts = [x.strip() for x in rest.split(',')] if rest.strip() else []
    mods = []
    if parts:
        last = parts[-1].split()
        parts[-1] = last[0] if last else ''
        mods = last[1:]
    r = Rec(); r.mn = mn
    def rd(ops):
        for o in ops:
            v, s = regs_of(o); r.vr |= v; r.sr |= s
    def wr(o):
        v, s = regs_of(o); r.vw |= v; r.sw |= s
    if mn.startswith('v_mfma'):
        r.kind = 'mfma'; wr(parts[0]); rd(parts[1:])
        r.a = regs_of(parts[1])[0]; r.b = regs_of(parts[2])[0]; r.c = regs_of(parts[3])[0]
    elif mn.startswith('v_'):
        r.kind = 'valu'
        wr(parts[0]); rd(parts[1:])
        if mn.startswith(('v_fmac', 'v_dot2c', 'v_writelane', 'v_permlane')): rd(parts[:1])
        if mn.startswith('v_permlane'): wr(parts[1])
        if mn.startswith(('v_readfirstlane', 'v_readlane')): r.lanerd = True
        if mn.startswith(TRANS): r.trans = True
        assert '_co_' not in mn
    elif mn.startswith('ds_read'):
        r.kind = 'ds'; wr(parts[0]); rd(parts[1:])
    elif mn.startswith('ds_write'):
        r.kind = 'ds'; rd(parts)
    elif mn.startswith('buffer_load'):
        r.kind = 'vmem'
        if 'lds' in mods: rd(parts); r.sr.add('m0'); r.dma = True
        else: wr(parts[0]); rd(parts[1:])
    elif mn.startswith('buffer_store'):
        r.kind = 'vmem'; rd(parts)
        if mn.endswith(('x3', 'x4')): r.sdata = regs_of(parts[0])[0]
    elif mn.startswith('global_load_lds'):
        r.kind = 'vmem'; rd(parts); r.sr.add('m0'); r.dma = True
    elif mn.startswith('global_load'):
        r.kind = 'vmem'; wr(parts[0]); rd(parts[1:])
    elif mn.startswith('global_store'):
        r.kind = 'vmem'; rd(parts)
        if mn.endswith(('x3', 'x4')): r.sdata = regs_of(parts[1])[0]
    elif mn.startswith('global_atomic'):
        r.kind = 'vmem'; rd(parts)
    elif mn.startswith(('buffer_wbl2', 'buffer_inv')):
        r.kind = 'vmem'
    elif mn.startswith(('s_load', 's_memrealtime', 's_memtime')):
        r.kind = 'smem'; wr(parts[0]); rd(parts[1:])
    elif mn.startswith('s_'):
        r.kind = 'salu'
        if mn.startswith(NODST_S): rd(parts)
        else:
            wr(parts[0]); rd(parts[1:])
            if 'saveexec' in mn: r.sw.add('exec')
        if mn == 's_nop': r.ws = int(parts[0], 0) + 1
    else:
        raise ValueError('unknown instr ' + text)
    return r

class Em:
    def __init__(s):
        s.lines = []; s.hist = []
        s.vm = []
        s.lg = []
        s.nop_count = 0
        s.ninstr = 0
    def save(s): return (list(s.hist), list(s.vm), list(s.lg))
    def restore(s, st): s.hist, s.vm, s.lg = list(st[0]), list(st[1]), list(st[2])
    def raw(s, t): s.lines.append(t)
    def c(s, t): s.lines.append('    ; ' + t)
    def label(s, name, flush=True):
        s.lines.append(name + ':')
        if flush: s.flush()
    def flush(s):
        s._put('s_nop 9', parse('s_nop 9'))
    def _put(s, text, r):
        s.lines.append('    ' + text); s.hist.append(r); s.ninstr += 1
        if len(s.hist) > 40: s.hist = s.hist[-40:]
    def _need(s, r):
        need = 0; dist = 0
        for p in reversed(s.hist):
            req = 0
            if p.kind == 'valu':
                if r.kind == 'mfma' and (p.vw & r.vr): req = max(req, 2)
                if r.kind in ('valu', 'mfma') and (p.sw & r.sr): req = max(req, 2)
                if r.kind == 'vmem' and (p.sw & r.sr): req = max(req, 5)
                if r.kind == 'salu' and (p.sw & r.sr): req = max(req, 1)
                if r.kind == 'salu' and r.mn.startswith('s_cbranch_vcc') and 'vcc' in p.sw: req = max(req, 2)
                if r.lanerd and (p.vw & r.vr): req = max(req, 1)
                if r.mn.startswith('v_permlane') and (p.vw & r.vr): req = max(req, 2)
                if p.trans and (p.vw & r.vr) and not r.trans: req = max(req, 1)
            if p.kind == 'mfma':
                big = 10 if p.mn.endswith('x4_f32') else 8
                if r.kind == 'mfma':
                    if p.vw & (r.a | r.b): req = max(req, big)
                    if (p.vw & r.c) and (p.vw != r.c or p.mn != r.mn): req = max(req, big)
                    if (p.vw & r.vw) and not (p.vw == r.c and r.c == r.vw): req = max(req, big)
                elif r.kind in ('valu', 'vmem', 'ds'):
                    if p.vw & (r.vr | r.vw): req = max(req, big)
                    if r.kind == 'valu' and (p.c & r.vw): req = max(req, 3)
            if p.kind == 'salu' and 'm0' in p.sw and r.dma: req = max(req, 1)
            if p.sdata and (p.sdata & r.vw): req = max(req, 2)
            need = max(need, req - dist)
            dist += p.ws
            if dist >= 12: break
        return need
    def _autowait(s, r):
        touched = r.vr | r.vw
        iv = max([k for k, (t, d) in enumerate(s.vm) if d & touched], default=-1)
        il = max([k for k, (t, d) in enumerate(s.lg) if d & touched], default=-1)
        if iv >= 0 or il >= 0: s._wait(iv, il)
    def _wait(s, iv, il):
        parts = []
        if iv >= 0:
            n = min(len(s.vm) - iv - 1, 62); parts.append('vmcnt(%d)' % n); s.vm = s.vm[len(s.vm) - n:] if n else []
        if il >= 0:
            n = min(len(s.lg) - il - 1, 14); parts.append('lgkmcnt(%d)' % n); s.lg = s.lg[len(s.lg) - n:] if n else []
        t = 's_waitcnt ' + ' '.join(parts)
        s._put(t, parse(t))
    def i(s, text, tag=None):
        r = parse(text)
        s._autowait(r)
        n = s._need(r)
        if n > 0:
            s._put('s_nop %d' % (n - 1), parse('s_nop %d' % (n - 1))); s.nop_count += 1
        s._put(text, r)
        if r.kind == 'vmem': s.vm.append((tag, set(r.vw)))
        if r.kind == 'ds': s.lg.append((tag, set(r.vw)))
    def wait_vm(s, tag):
        iv = max([k for k, (t, d) in enumerate(s.vm) if t == tag], default=-1)
        if iv >= 0: s._wait(iv, -1)
    def wait_both(s, tag):
        iv = max([k for k, (t, d) in enumerate(s.vm) if t == tag or (isinstance(tag, list) and t in tag)], default=-1)
        il = len(s.lg) - 1
        if iv >= 0 or il >= 0: s._wait(iv, il)
    def wait_lg(s):
        if s.lg: s._wait(-1, len(s.lg) - 1)
    def wait_vm_all(s):
        t = 's_waitcnt vmcnt(0)'; s._put(t, parse(t)); s.vm = []
    def wait_lg_all(s):
        t = 's_waitcnt lgkmcnt(0)'; s._put(t, parse(t)); s.lg = []
    def wait_all(s):
        t = 's_waitcnt vmcnt(0) lgkmcnt(0)'; s._put(t, parse(t)); s.vm = []; s.lg = []
    def text(s): return '\n'.join(s.lines) + '\n'

def vr(b, n=1): return 'v%d' % b if n == 1 else 'v[%d:%d]' % (b, b + n - 1)
def sr(b, n=1): return 's%d' % b if n == 1 else 's[%d:%d]' % (b, b + n - 1)
```

```python
import sys
from collections import deque
from asmlib import Em, vr, sr

NAME = 'gated_mix__linear_attn_block__dense_activation_squared_relu__prompt'
PROF = '--prof' in sys.argv
OPT = dict(a[2:].split('=') for a in sys.argv[1:] if a.startswith('--') and '=' in a)
OUT = [a for a in sys.argv[1:] if not a.startswith('--')]
OUT = OUT[0] if OUT else 'cdna_kernels/%s.s' % NAME
opt = lambda k, d: type(d)(OPT.get(k, d))

S = lambda k: k * 32768
S4 = S(4); GATE = S4; GS = S4 + 1024; ZB = S4 + 4096
WS_MB = 0x20000; LOC = 0x10000; WS_GB = 0x8000; WS_PROF = 0x80000
M_EARLY, M_LATE, M_O, M_EX = 0, 4, 12, 20
WS_KVP = 0x100000; WS_ZP = 0x180000; WS_EX = 0x1000000; WS_OB = 0x600000; WS_AB = 0x800000
P_QKV = 3072; P_W1 = 3584
LOG2E = 0x3fb8aa3b; EPS = 0x358637bd; NEPSL = 0xb5c1a2a0
SH = 4096

sW, sP, sI, sJ, sC, sRr, sRot, sA_, sH2, sT = 3, 4, 5, 6, 7, 8, 9, 10, 11, 12
t0, t1, t2 = 13, 14, 15
pX, pQKV, pWO, pBX, pW1, pB1, pW2, pB2, pG, pOUT, pDBG, pWS = 16, 18, 20, 22, 24, 26, 28, 30, 32, 34, 36, 38
dX, dQKV, dW1, dW2, dWO, dWS, dOUT = 40, 44, 48, 52, 56, 60, 64
sM4, sKx, sV, sHB = 68, 69, 70, 71
sAb = 72; sSl = 74
sMB, t4, t5 = 77, 78, 79
sA2 = 80
sLog2e, sEps = 22, 23
sSpin = 86; sMt = 87
sStamp = 88
sEx, sA3, sX_ = 16, 18, 17

vLane, vL16, vG_ = 1, 2, 3
vXa = 4; vWa = 12; vGa = 16; vD = 17; vE = 21; vSo = 23
vG0, vG1, vNE, vPo, vEp = 24, 25, 26, 27, 28
vMr = 0
aG0, aG1, aG2, aG3, vBias, vF = 32, 48, 64, 80, 88, 96
Xf = lambda t, s, mt: 128 + ((t * 2 + s) * 2 + mt) * 4
vBa = 4; vRw = 17; vRr = 20

e = Em()
I = e.i
nstamp = [0]
def stamp(grp='main'):
    if not PROF: return
    if 'pts' in OPT:
        if grp not in OPT['pts'].split(',') + ['end']: return
    elif grp != OPT.get('st', 'main') and grp != 'end': return
    k = nstamp[0]; nstamp[0] += 1
    assert k < 12
    e.wait_lg_all()
    I('%s s[100:101]' % OPT.get('clk', 's_memrealtime'))
    e.wait_lg_all()
    I('s_mov_b32 %s, s100' % sr(sStamp + k))

def srd_l(d, p, nbytes, shift=0):
    if shift: L = [['s_sub_u32 %s, %s, %d' % (sr(d), sr(p), shift), 's_subb_u32 %s, %s, 0' % (sr(d + 1), sr(p + 1))]]
    else: L = ['s_mov_b64 %s, %s' % (sr(d, 2), sr(p, 2))]
    return L + ['s_mov_b32 %s, 0x%x' % (sr(d + 2), nbytes + shift), 's_mov_b32 %s, 0x20000' % sr(d + 3)]
def run(x):
    if isinstance(x, str): I(x)
    elif isinstance(x, (list, tuple)):
        for y in x: run(y)
    else: x()
def set_m0(slotbase): I('s_add_u32 m0, %s, %d' % (sr(sM4), slotbase))
def dma(voff, d, soff, imm, tag):
    I('buffer_load_dwordx4 %s, %s, %s offen offset:%d lds' % (vr(voff), sr(d, 4), soff, imm), tag)
def mfma(d, a, b, c):
    I('v_mfma_f32_16x16x32_bf16 %s, %s, %s, %s' % (vr(d, 4), vr(a, 4), vr(b, 4), c if isinstance(c, str) else vr(c, 4)))
lab_n = [0]
def newlab(p): lab_n[0] += 1; return 'L_%s%d' % (p, lab_n[0])

def poll_issue(imm, tag):
    I('buffer_load_dword %s, %s, %s, %s offen offset:%d sc1' % (vr(vEp), vr(vPo), sr(dWS, 4), sr(sMB), imm), tag)
def poll_test(mask):
    I('v_cmp_ne_u32 vcc, %s, %s' % (sr(sT), vr(vEp)))
    I('s_and_b32 vcc_lo, vcc_lo, vcc_hi')
    I('s_and_b32 vcc_lo, vcc_lo, %s' % mask)
def poll_check(imm, mask):
    ok = newlab('ok'); lp = newlab('sp')
    poll_test(mask)
    I('s_cbranch_scc0 %s' % ok)
    st = e.save()
    I('s_mov_b32 %s, 0' % sr(sSpin))
    e.label(lp, flush=False)
    I('s_sleep %d' % opt('sleep', 2))
    poll_issue(imm, None)
    e.wait_vm_all()
    poll_test(mask)
    I('s_cbranch_scc0 %s' % ok)
    I('s_add_u32 %s, %s, 1' % (sr(sSpin), sr(sSpin)))
    I('s_cmp_lt_u32 %s, 0x100000' % sr(sSpin))
    I('s_cbranch_scc1 %s' % lp)
    e.restore(st)
    e.label(ok, flush=False)
def flag_store(voff, word_sgpr, word_imm, mask, vtmp):
    I('v_mov_b32 %s, %s' % (vr(vtmp), sr(sT)))
    if word_sgpr is None: I('s_mov_b32 %s, 0x%x' % (sr(t0), WS_MB))
    else: I('s_lshl2_add_u32 %s, %s, 0x%x' % (sr(t0), sr(word_sgpr), WS_MB))
    I('s_add_u32 %s, %s, 0x%x' % (sr(t1), sr(t0), LOC))
    I('s_cmp_eq_u32 %s, 0' % sr(sW))
    I('s_cselect_b32 exec_lo, %s, 0' % mask)
    I('s_mov_b32 exec_hi, 0')
    I('buffer_store_dword %s, %s, %s, %s offen offset:%d' % (vr(vtmp), vr(voff), sr(dWS, 4), sr(t1), word_imm * 4))
    I('buffer_store_dword %s, %s, %s, %s offen offset:%d sc1' % (vr(vtmp), vr(voff), sr(dWS, 4), sr(t0), word_imm * 4))
    I('s_mov_b64 exec, -1')

I('s_cmp_ge_u32 s2, 256')
I('s_cbranch_scc1 L_end')
I('s_load_dwordx16 s[16:31], s[0:1], 0')
I('s_load_dwordx8 s[32:39], s[0:1], 64')
if PROF:
    I('%s s[100:101]' % OPT.get('clk', 's_memrealtime')); nstamp[0] = 1
I('v_lshrrev_b32 v29, 6, v0')
I('v_and_b32 %s, 63, v0' % vr(vLane))
I('v_readfirstlane_b32 %s, v29' % sr(sW))
I('s_and_b32 %s, s2, 1' % sr(sP))
I('s_bfe_u32 %s, s2, 0x20001' % sr(t0))
I('s_bfe_u32 %s, s2, 0x20005' % sr(t1))
I('s_lshl2_add_u32 %s, %s, %s' % (sr(sI), sr(t0), sr(t1)))
I('s_bfe_u32 %s, s2, 0x20003' % sr(sC))
I('s_lshr_b32 %s, s2, 7' % sr(sRr))
I('s_lshl2_add_u32 %s, %s, %s' % (sr(sJ), sr(sRr), sr(sC)))
I('s_lshl1_add_u32 %s, %s, %s' % (sr(sRot), sr(t1), sr(sJ)))
I('s_and_b32 %s, %s, %d' % (sr(sRot), sr(sRot), opt('rotmask', 7)))
I('s_lshl_b32 %s, %s, 7' % (sr(sKx), sr(sRot)))
I('s_lshl_b32 %s, %s, 12' % (sr(sM4), sr(sW)))
I('v_lshrrev_b32 v29, 3, %s' % vr(vLane))
I('v_and_b32 v30, 7, %s' % vr(vLane))
I('v_lshrrev_b32 %s, 4, %s' % (vr(vG_), vr(vLane)))
I('s_lshl3_add_u32 %s, %s, %s' % (sr(t0), sr(sI), sr(sW)))
I('s_lshl_b32 %s, %s, 14' % (sr(t0), sr(t0)))
I('s_add_u32 %s, %s, %d' % (sr(t0), sr(t0), SH))
I('v_xor_b32 v31, v30, %s' % vr(vG_))
I('v_lshlrev_b32 v31, 4, v31')
I('v_lshl_add_u32 v31, v29, 10, v31')
I('v_add_u32 %s, %s, v31' % (vr(vD), sr(t0)))
I('v_xor_b32 %s, 64, %s' % (vr(vD + 1), vr(vD)))
I('v_add_u32 %s, %d, %s' % (vr(vD + 1), 8192 - 1024, vr(vD + 1)))
I('s_lshr_b32 %s, %s, 1' % (sr(sA_), sr(sW)))
I('s_and_b32 %s, %s, 1' % (sr(sH2), sr(sW)))
I('s_lshl2_add_u32 %s, %s, %s' % (sr(sV), sr(sP), sr(sC)))
I('s_lshr_b32 %s, %s, 1' % (sr(t0), sr(sV)))
I('s_mul_i32 %s, %s, 7' % (sr(sHB), sr(t0)))
I('s_and_b32 %s, %s, 1' % (sr(t1), sr(sC)))
I('s_lshr_b32 %s, %s, 1' % (sr(sC), sr(sC)))
I('s_lshl1_add_u32 %s, %s, %s' % (sr(sRr), sr(sRr), sr(t1)))
I('s_xor_b32 %s, %s, %s' % (sr(sMt), sr(sW), sr(t1)))
I('v_and_b32 v24, 2, v29')
I('s_lshl_b32 %s, %s, 2' % (sr(t0), sr(sH2)))
I('v_xor_b32 v24, v30, v24')
I('v_xor_b32 v24, %s, v24' % sr(t0))
I('v_lshlrev_b32 v24, 4, v24')
I('s_lshl_b32 %s, %s, 3' % (sr(t0), sr(sW)))
I('v_add_u32 v25, %s, v29' % sr(t0))
I('v_lshlrev_b32 %s, 4, %s' % (vr(vL16), vr(vLane)))
I('s_mov_b32 %s, 0x%x' % (sr(dX + 2), 2048 * 1024 + SH)); I('s_mov_b32 %s, 0x20000' % sr(dX + 3))
I('s_mov_b32 %s, 0x%x' % (sr(dQKV + 2), 512 * P_QKV + SH)); I('s_mov_b32 %s, 0x20000' % sr(dQKV + 3))
I('s_mov_b32 %s, 0x%x' % (sr(dW1 + 2), 512 * P_W1 + SH)); I('s_mov_b32 %s, 0x20000' % sr(dW1 + 3))
set_m0(S(0))
I('s_cmp_ge_u32 %s, 2' % sr(sRr))
I('s_cbranch_scc1 L_roleQ')
st0 = e.save(); ns0 = nstamp[0]

def bias_l(acc_regs, pk):
    L = []
    for a_ in acc_regs:
        L += ['v_lshlrev_b32 %s, 16, %s' % (vr(a_), vr(pk)), 'v_and_b32 %s, 0xffff0000, %s' % (vr(a_ + 1), vr(pk)),
              'v_lshlrev_b32 %s, 16, %s' % (vr(a_ + 2), vr(pk + 1)), 'v_and_b32 %s, 0xffff0000, %s' % (vr(a_ + 3), vr(pk + 1))]
    return L
def cvt2(dst2, src):
    return ['v_cvt_pk_bf16_f32 %s, %s, %s' % (vr(dst2), vr(src), vr(src + 1)), 'v_cvt_pk_bf16_f32 %s, %s, %s' % (vr(dst2 + 1), vr(src + 2), vr(src + 3))]
def h_l(src, dst2):
    L = ['v_max_f32 %s, 0, %s' % (vr(src + k), vr(src + k)) for k in range(4)]
    L += ['v_mul_f32 %s, %s, %s' % (vr(src + k), vr(src + k), vr(src + k)) for k in range(4)]
    return L + cvt2(dst2, src)
def phi_l(src, dst2, tmp):
    L = ['v_fma_f32 %s, %s, %s, %s' % (vr(tmp + k), vr(src + k), sr(sLog2e), vr(vNE)) for k in range(4)]
    L += ['v_exp_f32_e64 %s, %s clamp' % (vr(tmp + k), vr(tmp + k)) for k in range(4)]
    L += ['v_max_f32 %s, %s, %s' % (vr(src + k), sr(sEps), vr(src + k)) for k in range(4)]
    L += ['v_add_f32 %s, %s, %s' % (vr(src + k), vr(src + k), vr(tmp + k)) for k in range(4)]
    return L + cvt2(dst2, src)
def add4(d, a, b): return ['v_add_f32 %s, %s, %s' % (vr(d + k), vr(a + k), vr(b + k)) for k in range(4)]
def st4(f, soff, imm, tag):
    return lambda: I('buffer_store_dwordx4 %s, %s, %s, %s offen offset:%d sc1' % (vr(f, 4), vr(vL16), sr(dWS, 4), sr(soff), imm), tag)

def program(role):
    KV = role == 'KV'
    dA, pA, pitchA, dB, pB, pitchB = (dQKV, pQKV, P_QKV, dW1, pW1, P_W1) if KV else (dW1, pW1, P_W1, dQKV, pQKV, P_QKV)
    g1add = 1024 if KV else 128
    DS = dict(D0=0, D1=1, E0=2, E1=4, E2=3, W0=0, W1=1, R1=0, R2=2) if KV else dict(D0=2, D1=3, E0=0, E1=4, E2=1, W0=2, W1=3, R1=2, R2=0)
    QB = S(3) + 16384
    ev = set()
    vmq = deque(); vq = deque(); lq = deque()
    def vm_add(thunks, tag, *need):
        for f in thunks: vmq.append((f, tag, set(need)))
    def vm_slot():
        if vmq and vmq[0][2] <= ev: run(vmq.popleft()[0])
    def vm_drain(tags):
        tags = tags if isinstance(tags, list) else [tags]
        idx = max([k for k, x in enumerate(vmq) if x[1] in tags], default=-1)
        for _ in range(idx + 1):
            assert vmq[0][2] <= ev, ('unmet', vmq[0][1], vmq[0][2] - ev)
            run(vmq.popleft()[0])
    def q_drain(q):
        while q: run(q.popleft())
    cnt = [0]
    def seq(mf, reads=(), vmk=4, nv=0, nl=0, rper=2):
        reads = list(reads)
        for x in reads[:rper]: I(x)
        reads = reads[rper:]
        for m in mf:
            mfma(*m)
            for x in reads[:rper]: I(x)
            busy = bool(reads); reads = reads[rper:]
            if not busy:
                for _ in range(nl):
                    if lq: run(lq.popleft())
            for _ in range(nv):
                if vq: run(vq.popleft())
            cnt[0] += 1
            if cnt[0] >= vmk: cnt[0] = 0; vm_slot()
        for x in reads: I(x)
    def barrier(name, tags=None):
        stamp(name[0]); stamp(name + 'a')
        if tags is not None:
            vm_drain(tags); e.wait_both(tags)
        else: e.wait_lg()
        stamp(name + 'w')
        I('s_barrier'); ev.add(name)
        stamp(name[0]); stamp(name + 'b')

    e.wait_lg_all()
    if PROF: I('s_mov_b32 %s, s100' % sr(sStamp))
    I('s_sub_u32 %s, %s, %d' % (sr(dX), sr(pX), SH)); I('s_subb_u32 %s, %s, 0' % (sr(dX + 1), sr(pX + 1)))
    dma(vD, dX, sr(sKx), 0, ('c', 0))
    dma(vD + 1, dX, sr(sKx), 1024, ('c', 0))
    I('s_sub_u32 %s, %s, %d' % (sr(dA), sr(pA), SH)); I('s_subb_u32 %s, %s, 0' % (sr(dA + 1), sr(pA + 1)))
    if KV:
        I('s_lshl_b32 %s, %s, 7' % (sr(t0), sr(sV)))
        I('s_add_u32 %s, %s, %d' % (sr(t2), sr(t0), 1024 + SH - 2048))
        I('s_add_u32 %s, %s, %s' % (sr(t1), sr(sHB), sr(sRr)))
        I('s_lshl_b32 %s, %s, 7' % (sr(t1), sr(t1)))
    else:
        I('s_lshl1_add_u32 %s, %s, %s' % (sr(t0), sr(sRr), sr(sHB)))
        I('s_sub_u32 %s, %s, 2' % (sr(t0), sr(t0)))
        I('s_lshl_b32 %s, %s, 7' % (sr(t0), sr(t0)))
        I('s_add_u32 %s, %s, %d' % (sr(t2), sr(t0), SH - 2048))
        I('s_lshl_b32 %s, %s, 7' % (sr(t1), sr(sV)))
    I('v_mul_u32_u24 v26, %d, v25' % pitchA)
    I('v_add3_u32 %s, v26, v24, %s' % (vr(vD + 2), sr(t2)))
    I('s_mul_i32 %s, %s, %d' % (sr(t4), sr(sKx), pitchA // 2))
    I('v_add_u32 %s, %d, %s' % (vr(vD + 3), g1add - 1024, vr(vD + 2)))
    dma(vD + 2, dA, sr(t4), 2048, ('c', 0))
    dma(vD + 3, dA, sr(t4), 3072, ('c', 0))
    def kx_next():
        I('s_add_u32 %s, %s, 128' % (sr(sKx), sr(sKx)))
        I('s_and_b32 %s, %s, 0x%x' % (sr(sKx), sr(sKx), 0x80 if 'fake' in OPT else 0x3ff))
    def chunk_thunks(t):
        def a(): set_m0(S(t % 4)); kx_next(); dma(vD, dX, sr(sKx), 0, ('c', t))
        def b(): dma(vD + 1, dX, sr(sKx), 1024, ('c', t))
        def c(): I('s_mul_i32 %s, %s, %d' % (sr(t4), sr(sKx), pitchA // 2)); dma(vD + 2, dA, sr(t4), 2048, ('c', t))
        def d(): dma(vD + 3, dA, sr(t4), 3072, ('c', t))
        return [a, b, c, d]
    I('s_or_b32 %s, s2, %s' % (sr(t2), sr(sW)))
    I('s_cmp_eq_u32 %s, 0' % sr(t2))
    I('s_cselect_b64 exec, 1, 0')
    I('global_load_dword %s, %s, %s sc0 sc1' % (vr(vEp), vr(vL16), sr(pWS, 2)))
    I('s_mov_b64 exec, -1')
    I('s_lshl_b32 %s, %s, 6' % (sr(t2), sr(sH2)))
    I('s_add_u32 %s, %s, %s' % (sr(sMB), sr(t2), sr(t1 if KV else t0)))
    I('v_lshl_add_u32 v26, %s, 3, %s' % (vr(vG_), sr(sMB)))
    if KV:
        for k in range(2): I('global_load_dwordx2 %s, v26, %s offset:%d' % (vr(vBias + 2 * k, 2), sr(pB1, 2), k * 32))
        I('s_add_u32 %s, %s, 6' % (sr(t5), sr(sHB)))
        I('s_lshl_b32 %s, %s, 7' % (sr(t5), sr(t5)))
        I('s_add_u32 %s, %s, %s' % (sr(sMB), sr(t2), sr(t5)))
        I('v_lshl_add_u32 v26, %s, 3, %s' % (vr(vG_), sr(sMB)))
        for k in range(2): I('global_load_dwordx2 %s, v26, %s offset:%d' % (vr(vBias + 4 + 2 * k, 2), sr(pB1, 2), k * 32))
    else:
        for k in range(4): I('global_load_dwordx2 %s, v26, %s offset:%d' % (vr(vBias + 2 * k, 2), sr(pB1, 2), (k & 1) * 32 + (k >> 1) * 128))
        I('v_add_u32 v26, %s, %s' % (sr(sKx), vr(vL16)))
        I('s_mov_b32 m0, %d' % GATE)
        I('v_and_b32 v26, 0x3ff, v26')
        I('global_load_lds_dwordx4 v26, %s' % sr(pG, 2), ('c', 1))
    run(chunk_thunks(1))
    I('v_mul_u32_u24 v26, %d, v25' % pitchB)
    I('v_add3_u32 %s, v26, v24, %s' % (vr(vE), sr(t1)))
    if KV: I('v_add3_u32 %s, v26, v24, %s' % (vr(vE + 1), sr(t5)))
    I('v_and_b32 v24, 15, %s' % vr(vLane))
    I('v_lshrrev_b32 v25, 1, v24')
    I('v_xor_b32 v25, v25, %s' % vr(vG_))
    I('v_lshlrev_b32 v25, 4, v25')
    I('s_lshl_b32 %s, %s, 12' % (sr(t0), sr(sMt)))
    I('v_lshl_add_u32 v25, v24, 7, v25')
    I('v_add_u32 %s, %s, v25' % (vr(vXa), sr(t0)))
    I('v_xor_b32 %s, 64, %s' % (vr(vXa + 1), vr(vXa)))
    for k in range(2): I('v_xor_b32 %s, 0x1000, %s' % (vr(vXa + 2 + k), vr(vXa + k)))
    I('v_bfe_u32 v24, %s, 2, 2' % vr(vLane))
    I('v_and_b32 v25, 3, v29')
    I('v_and_b32 v26, 3, %s' % vr(vLane))
    I('v_lshlrev_b32 v26, 3, v26')
    I('v_lshl_add_u32 v31, v25, 5, v26')
    I('v_lshl_add_u32 v26, v24, 7, v31')
    I('v_lshl_add_u32 v26, %s, 12, v26' % vr(vG_))
    I('s_lshl_b32 %s, %s, 6' % (sr(t0), sr(sH2)))
    I('v_xor_b32 %s, %s, v26' % (vr(vWa), sr(t0)))
    I('v_xor_b32 %s, 32, %s' % (vr(vWa + 1), vr(vWa)))
    I('s_mov_b32 %s, 0x%x' % (sr(sEps), EPS))
    I('s_or_b32 %s, s2, %s' % (sr(t0), sr(sW)))
    I('s_cmp_lg_u32 %s, 0' % sr(t0))
    lab = newlab('noep')
    I('s_cbranch_scc1 %s' % lab)
    st = e.save()
    I('v_add_u32 v24, 1, %s' % vr(vEp))
    I('v_or_b32 v24, 1, v24')
    I('s_mov_b64 exec, 1')
    I('global_store_dword %s, v24, %s sc1' % (vr(vL16), sr(pDBG, 2)))
    I('global_store_dword %s, v24, %s sc1' % (vr(vL16), sr(pWS, 2)))
    I('s_mov_b64 exec, -1')
    e.restore(st)
    e.label(lab, flush=False)
    if KV:
        for k in range(4): I('v_mov_b32 %s, %s' % (vr(aG2 + k), sr(sEps)))
    else:
        for grp, a_ in ((0, aG0), (1, aG1)):
            for nt2 in range(2): run(bias_l([a_ + (nt2 * 2) * 4, a_ + (nt2 * 2 + 1) * 4], vBias + (grp * 2 + nt2) * 2))

    A = vq.append
    for k in range(4): A('v_add_u32 %s, 0x10000, %s' % (vr(vXa + 4 + k), vr(vXa + k)))
    for k in range(2): A('v_add_u32 %s, 0x10000, %s' % (vr(vWa + 2 + k), vr(vWa + k)))
    A(['s_sub_u32 %s, %s, %d' % (sr(dB), sr(pB), SH), 's_subb_u32 %s, %s, 0' % (sr(dB + 1), sr(pB + 1))])
    for x in srd_l(dWS, pWS, 0x10000000) + srd_l(dW2, pW2, 1792 * 1024, SH) + srd_l(dWO, pWO, 512 * 1024, SH) + srd_l(dOUT, pOUT, 0x200000): A(x)
    A('s_mov_b32 %s, 0x%x' % (sr(sLog2e), LOG2E))
    A('v_mov_b32 %s, 0x%x' % (vr(vNE), NEPSL))
    A('v_lshlrev_b32 v24, 1, %s' % vr(vG_)); A('v_xor_b32 v24, v30, v24'); A('v_lshlrev_b32 v24, 4, v24')
    A('s_lshl_b32 %s, %s, 14' % (sr(t0), sr(sH2))); A('s_lshl_b32 %s, %s, 7' % (sr(t1), sr(sJ)))
    A('s_add_u32 %s, %s, %s' % (sr(t0), sr(t0), sr(t1)))
    A('v_lshl_add_u32 v24, v29, 10, v24'); A('v_add_u32 %s, %s, v24' % (vr(vSo), sr(t0)))
    A('s_lshr_b32 %s, %s, 1' % (sr(t0), sr(sA_))); A('s_lshl1_add_u32 %s, %s, %s' % (sr(t0), sr(sP), sr(t0)))
    A('s_mul_i32 %s, %s, 7' % (sr(t0), sr(t0))); A('s_and_b32 %s, %s, 1' % (sr(t1), sr(sA_)))
    A('s_add_u32 %s, %s, %s' % (sr(t2), sr(t0), sr(t1))); A('s_lshl_b32 %s, %s, 16' % (sr(sSl + 1), sr(t2)))
    A('s_add_u32 %s, %s, %s' % (sr(t2), sr(t2), sr(t1))); A('s_add_u32 %s, %s, 2' % (sr(t2), sr(t2)))
    A('s_lshl_b32 %s, %s, 16' % (sr(sSl), sr(t2)))
    A('s_lshl1_add_u32 %s, %s, %s' % (sr(t0), sr(t0), sr(t1))); A('s_add_u32 %s, %s, 12' % (sr(t0), sr(t0)))
    A('s_lshl_b32 %s, %s, 15' % (sr(sSl + 2), sr(t0)))
    A('s_lshl4_add_u32 %s, %s, %s' % (sr(t0), sr(sP), sr(sI))); A('s_lshl_b32 %s, %s, 3' % (sr(t0), sr(t0)))
    A('s_add_u32 %s, %s, %s' % (sr(t1), sr(t0), sr(sMt))); A('s_xor_b32 %s, %s, 1' % (sr(t2), sr(t1)))
    A('s_mul_i32 %s, %s, %d' % (sr(t1), sr(t1), 28 * 1024)); A('s_mul_i32 %s, %s, %d' % (sr(t2), sr(t2), 28 * 1024))
    A('s_add_u32 %s, %s, 0x%x' % (sr(sAb), sr(t1), WS_AB)); A('s_add_u32 %s, %s, 0x%x' % (sr(sAb + 1), sr(t2), WS_AB))
    A('s_lshl1_add_u32 %s, %s, %s' % (sr(t0), sr(sH2), sr(t0))); A('s_lshl2_add_u32 %s, %s, %s' % (sr(t0), sr(sP), sr(t0)))
    A('s_xor_b32 %s, %s, 4' % (sr(t1), sr(t0)))
    A('s_mul_i32 %s, %s, %d' % (sr(t2), sr(sA_), 7 * 1024)); A('s_add_u32 %s, %s, 0x%x' % (sr(t2), sr(t2), WS_AB))
    A('s_mul_i32 %s, %s, %d' % (sr(t1), sr(t1), 28 * 1024)); A('s_add_u32 %s, %s, %s' % (sr(sA2), sr(t1), sr(t2)))
    A('s_add_u32 %s, %s, %d' % (sr(sA2 + 1), sr(sA2), 28 * 1024))
    A('s_mul_i32 %s, %s, %d' % (sr(t1), sr(t0), 28 * 1024)); A('s_add_u32 %s, %s, %s' % (sr(sA2 + 2), sr(t1), sr(t2)))
    A('s_add_u32 %s, %s, %d' % (sr(sA2 + 3), sr(sA2 + 2), 28 * 1024))
    A('s_and_b32 %s, %s, 127' % (sr(t0), sr(t0))); A('s_lshl2_add_u32 %s, %s, %s' % (sr(t0), sr(t0), sr(sA_)))
    A('s_lshl_b32 %s, %s, 12' % (sr(t0), sr(t0))); A('s_add_u32 %s, %s, 0x%x' % (sr(sA2 + 4), sr(t0), WS_OB))
    A('s_add_u32 %s, %s, 0x4000' % (sr(sA2 + 5), sr(sA2 + 4)))
    A('s_mul_i32 %s, %s, %d' % (sr(t0), sr(sP), -2 * 128 * 28 * 1024)); A('s_add_u32 %s, %s, %d' % (sr(t0), sr(t0), 128 * 28 * 1024))
    A('s_add_u32 %s, %s, %s' % (sr(sA3), sr(sA2 + 2), sr(t0))); A('s_add_u32 %s, %s, %s' % (sr(sA3 + 1), sr(sA2 + 3), sr(t0)))
    A('s_mul_i32 %s, %s, %d' % (sr(sX_), sr(sP), -2 * 896 * 1024)); A('s_add_u32 %s, %s, %d' % (sr(sX_), sr(sX_), 896 * 1024))
    A('s_lshl_b32 %s, s2, 8' % sr(sMB)); A('s_add_u32 %s, %s, 0x%x' % (sr(sMB), sr(sMB), WS_MB))
    A('s_lshl3_add_u32 %s, s2, %s' % (sr(sEx), sr(sW))); A('s_lshl_b32 %s, %s, 11' % (sr(sEx), sr(sEx)))
    A('s_add_u32 %s, %s, 0x%x' % (sr(sEx), sr(sEx), WS_EX))
    A('v_and_b32 v24, 31, %s' % vr(vLane)); A('v_lshrrev_b32 v25, 5, %s' % vr(vLane)); A('v_lshlrev_b32 v25, 16, v25')
    A('v_lshl_add_u32 %s, v24, 2, v25' % vr(vPo))
    A('v_and_b32 v24, 1, %s' % vr(vLane)); A('v_and_b32 v25, 6, %s' % vr(vLane)); A('v_lshl_add_u32 v24, v25, 2, v24')
    A('v_and_b32 v25, 8, %s' % vr(vLane)); A('v_lshl_add_u32 v24, v25, 4, v24'); A('s_and_b32 %s, s2, 0x66' % sr(t0))
    A('v_or_b32 v24, %s, v24' % sr(t0)); A('v_lshlrev_b32 %s, 8, v24' % vr(vMr))
    if KV:
        A('v_bfe_u32 v24, %s, 2, 2' % vr(vLane)); A('v_and_b32 v25, 3, %s' % vr(vLane)); A('v_lshlrev_b32 v24, 1, v24')
        A('v_lshl_add_u32 v24, v25, 5, v24'); A('s_and_b32 %s, s2, 0x19' % sr(t0)); A('s_or_b32 %s, %s, 0x80' % (sr(t0), sr(t0)))
        A('v_or_b32 v24, %s, v24' % sr(t0)); A('v_lshlrev_b32 %s, 8, v24' % vr(vGa))
    A('v_mov_b32 v30, 0')
    if not KV:
        A('v_lshlrev_b32 %s, 4, %s' % (vr(vGa), vr(vG_))); A('v_add_u32 %s, %d, %s' % (vr(vGa), GATE, vr(vGa)))
        for k in range(4): A('v_mov_b32 %s, %s' % (vr(aG3 + 4 + k), sr(sEps)))
    else:
        for nt2 in range(2):
            for x in bias_l([aG2 + (nt2 * 2) * 4, aG2 + (nt2 * 2 + 1) * 4], vBias + nt2 * 2): A(x)
        for nt2 in range(2):
            for x in bias_l([aG3 + nt2 * 4], vBias + 4 + nt2 * 2): A(x)
    A(lambda: ev.add('setup'))

    def p2_thunks(q):
        out = []
        for k in range(4):
            def f(k=k):
                if k == 0: set_m0(S(q))
                if not KV or k % 2 == 0:
                    kx_next()
                    I('s_mul_i32 %s, %s, %d' % (sr(t4), sr(sKx), pitchB // 2))
                    I('s_add_u32 %s, %s, %d' % (sr(t4), sr(t4), SH - k * 1024))
                else:
                    I('s_sub_u32 %s, %s, 1024' % (sr(t4), sr(t4)))
                dma(vE + (k % 2 if KV else 0), dB, sr(t4), k * 1024, ('p2', q))
            out.append(f)
        return out
    def slab_thunks(name):
        out = []
        for k in range(4):
            def f(k=k):
                if k == 0: set_m0(S(DS[name]))
                off = (k & 1) * 8192 + SH - k * 1024
                if name != 'E1': off += (k >> 1) * 32768
                if name in ('D1', 'W1'): off += 65536
                d = dWO if name[0] == 'W' else dW2
                if 'fake' in OPT:
                    I('s_mov_b32 %s, %d' % (sr(t4), off & 0xffff))
                elif name[0] == 'W':
                    I('s_lshl_b32 %s, %s, 17' % (sr(t4), sr(sA_)))
                    I('s_add_u32 %s, %s, %d' % (sr(t4), sr(t4), off))
                else:
                    base = {'D0': sSl, 'D1': sSl, 'E0': sSl + 1, 'E2': sSl + 1, 'E1': sSl + 2}[name]
                    I('s_add_u32 %s, %s, %d' % (sr(t4), sr(base), off))
                    if name == 'E2' or (name == 'E1' and k >= 2): I('s_add_u32 %s, %s, %s' % (sr(t4), sr(t4), sr(sX_)))
                dma(vSo, d, sr(t4), k * 1024, name)
            out.append(f)
        return out

    accS = (lambda u, mt: 32 + (u * 2 + mt) * 4) if KV else (lambda u, mt: 96 + (u * 2 + mt) * 4)
    accO = (lambda u, mt: 64 + (u * 2 + mt) * 4) if KV else (lambda u, mt: 32 + (u * 2 + mt) * 4)
    Ar = lambda n, mt: 128 + ((n % 6) * 2 + mt) * 4
    blk = 96 if KV else 64
    BREG = [176, 192, 208, 224] * 2 + [240, blk, blk + 16, 176, 192, 208, 224, 240, blk, blk + 16]
    BSRC = {0: ('D0', 0), 1: ('D0', 1), 2: ('D1', 0), 3: ('D1', 1), 8: ('E0', 0), 9: ('E0', 1), 10: ('E1', 0), 11: ('E1', 1),
            12: ('E2', 0), 13: ('E2', 1), 14: ('W0', 0), 15: ('W0', 1), 16: ('W1', 0), 17: ('W1', 1)}
    vA1 = 29; vOo = 12; vB2 = 14; vOmf = 21; vL6 = 13
    steps = [(sA2, l) for l in range(4)] + [(sA2 + 2, l) for l in range(7)] + [(sA3, l) for l in (6, 4, 5)] + [(sA2 + 4, l) for l in range(4)]
    def a_load(n):
        base, ls = steps[n]
        if 'fake' in OPT:
            return ['buffer_load_dwordx4 %s, %s, %s, %s offen offset:%d sc1' % (vr(Ar(n, mt), 4), vr(vA1), sr(dX, 4), sr(sM4), (n & 1) * 2048 + mt * 1024) for mt in range(2)]
        return ['buffer_load_dwordx4 %s, %s, %s, %s offen offset:%d sc1' % (vr(Ar(n, mt), 4), vr(vL16 if ls < 4 else vA1),
                sr(dWS, 4), sr(base + mt), (ls % 4) * 1024) for mt in range(2)]
    def b_reads(*ns):
        lst = []
        for n in ns:
            name, sub = BSRC[n]; sl = DS[name]
            for u in range(4):
                rd = lambda a_, so: ['ds_read_b64_tr_b16 %s, %s offset:%d' % (vr(BREG[n] + u * 4 + 2 * h, 2), vr(a_), so + h * 4096 + sub * 2048) for h in range(2)]
                if sl == 4: lst.append(['v_add_u32 %s, 0x10000, %s' % (vr(vL6), vr(vBa + 4 + u))] + rd(vL6, 0))
                else: lst += rd(vBa + 4 * (sl >> 1) + u, (sl & 1) * 32768)
        return lst
    def a_need(n):
        need = ['hf1'] if n < 8 else (['hf2'] if n < 11 else (['hf3'] if n < 14 else ['of']))
        need.append('p2s%d' % n if n < 6 else 'f%d' % (n - 6))
        return need

    for t in range(2, 8): vm_add(chunk_thunks(t), ('c', t), *(['B%d' % (t - 3)] if t > 3 else []))
    vm_add([lambda: I('global_load_dword %s, v30, %s sc1' % (vr(vEp), sr(pDBG, 2)), 'ep')], 'ep', 'setup')
    H1S = opt('h1kv', 12) if KV else opt('h1q', 13)
    if KV:
        for q in range(4): vm_add(p2_thunks(q), ('p2', q), 'B%d' % (q + 5), 'setup')
        vm_add(slab_thunks('D0'), 'D0', 'P1')
        vm_add(slab_thunks('D1'), 'D1', 'P2')
        vm_add(slab_thunks('E1'), 'E1', 'P2')
        vm_add([lambda: poll_issue(0, 'p1')], 'p1', 'p2s%d' % (H1S - 3))
        for n in range(3): vm_add(a_load(n), ('a', n), *a_need(n))
        vm_add(slab_thunks('E0'), 'E0', 'P3')
        for n in range(3, 6): vm_add(a_load(n), ('a', n), *a_need(n))
    else:
        for q in range(2): vm_add(p2_thunks(q), ('p2', q), 'B%d' % (q + 5), 'setup')
        vm_add(slab_thunks('D0'), 'D0', 'B7')
        vm_add(slab_thunks('D1'), 'D1', 'B8')
        vm_add(slab_thunks('E0'), 'E0', 'P1')
        vm_add([lambda: poll_issue(0, 'p1')], 'p1', 'p2s%d' % (H1S - 3))
        for n in range(6):
            if n == opt('pkpos', 2): vm_add([lambda: poll_issue(128, 'pk')], 'pk', 'hf1')
            vm_add(a_load(n), ('a', n), *a_need(n))

    def p1_reads(t, s_):
        fb = vF + 16 * s_; hi = (t % 4) >> 1; so = ((t % 4) & 1) * 32768
        lst = []
        xr = lambda mt: lst.append('ds_read_b128 %s, %s offset:%d' % (vr(Xf(t, s_, mt), 4), vr(vXa + hi * 4 + mt * 2 + s_), so))
        def wr(grp, nt2):
            for h in range(2):
                lst.append('ds_read_b64_tr_b16 %s, %s offset:%d' % (vr(fb + (grp * 2 + nt2) * 4 + 2 * h, 2), vr(vWa + hi * 2 + nt2),
                           so + 2048 + grp * 1024 + s_ * 16384 + h * 512))
        xr(0); wr(0, 0); xr(1); wr(0, 1); wr(1, 0); wr(1, 1)
        return lst
    def p1_mf(t, s_):
        fb = vF + 16 * s_; first = (t == 0 and s_ == 0); lst = []
        for grp, a_ in ((0, aG0), (1, aG1)):
            for nt2 in range(2):
                for mt in range(2):
                    d = a_ + (nt2 * 2 + mt) * 4; w_ = fb + (grp * 2 + nt2) * 4; x_ = Xf(t, s_, mt)
                    c_ = d
                    if first and KV: c_ = aG2 if grp == 0 else '0'
                    lst.append((d, x_, w_, c_) if KV else (d, w_, x_, c_))
        return lst
    def p2_reads(k):
        t, s_ = k >> 1, k & 1
        fb = vF + 16 * (k & 1)
        lst = []
        if KV: slot, sub = t >> 1, (t & 1) * 2
        else: slot, sub = t >> 2, t & 3
        hi = slot >> 1; so = (slot & 1) * 32768
        for grp in range(2 if KV else 1):
            for nt2 in range(2):
                for h in range(2):
                    lst.append('ds_read_b64_tr_b16 %s, %s offset:%d' % (vr(fb + (grp * 2 + nt2) * 4 + 2 * h, 2), vr(vWa + hi * 2 + nt2),
                               so + (sub + grp) * 1024 + s_ * 16384 + h * 512))
        if not KV: lst.append('ds_read_b128 %s, %s offset:%d' % (vr(fb + 8, 4), vr(vGa), k * 64))
        return lst
    def p2_mf(k):
        t, s_ = k >> 1, k & 1
        fb = vF + 16 * (k & 1)
        lst = []
        for nt2 in range(2):
            for mt in range(2):
                d = aG2 + (nt2 * 2 + mt) * 4
                lst.append((d, fb + nt2 * 4, Xf(t, s_, mt), aG3 + 4 if (k == 0 and not KV) else d))
        if KV:
            for nt2 in range(2): lst.append((aG3 + nt2 * 4, fb + 8 + nt2 * 4, Xf(t, s_, 0), aG3 + nt2 * 4))
        else: lst.append((aG3, fb + 8, Xf(t, s_, 0), '0' if k == 0 else aG3))
        return lst
    VK1 = opt('vk1', 4)
    for t in range(8):
        e.c('pass1 chunk %d' % t)
        barrier('B%d' % t, ('c', t))
        if t == 0: stamp()
        stamp('p1')
        if t == 0:
            run(p1_reads(0, 0))
            for _ in range(4): vm_slot()
        else: seq(p1_mf(t - 1, 1), p1_reads(t, 0), vmk=VK1, nv=2)
        e.wait_lg()
        seq(p1_mf(t, 0), p1_reads(t, 1), vmk=VK1, nv=(2 if t else 1))
    q_drain(vq)
    barrier('B8', [('p2', 0), 'ep'])
    stamp('p1')
    I('v_readfirstlane_b32 %s, %s' % (sr(sT), vr(vEp)))
    okl = newlab('epok'); lp = newlab('eplp')
    I('s_cmp_lg_u32 %s, 0' % sr(sT))
    I('s_cbranch_scc1 %s' % okl)
    st = e.save()
    I('s_mov_b32 %s, 0' % sr(sSpin))
    e.label(lp, flush=False)
    I('global_load_dword %s, v30, %s sc1' % (vr(vEp), sr(pDBG, 2)))
    e.wait_vm_all()
    I('v_readfirstlane_b32 %s, %s' % (sr(sT), vr(vEp)))
    I('s_add_u32 %s, %s, 1' % (sr(sSpin), sr(sSpin)))
    I('s_cmp_lg_u32 %s, 0' % sr(sT))
    I('s_cbranch_scc1 %s' % okl)
    I('s_cmp_lt_u32 %s, 0x100000' % sr(sSpin))
    I('s_cbranch_scc1 %s' % lp)
    e.restore(st)
    e.label(okl, flush=False)
    seq(p1_mf(7, 1), p2_reads(0), vmk=3)
    stamp(); stamp('P')

    if KV:
        tmp, ones = vBias, vBias + 4
        for k in range(4): A('v_mov_b32 %s, 0x3f803f80' % vr(ones + k))
        A('s_add_u32 %s, %s, %d' % (sr(t0), sr(sM4), S4 + 2048)); A('v_add_u32 v24, %s, %s' % (sr(t0), vr(vL16)))
        A('s_lshl_b32 %s, %s, 7' % (sr(t0), sr(sW))); A('s_add_u32 %s, %s, %d' % (sr(t0), sr(t0), ZB))
        A('v_and_b32 v25, 15, %s' % vr(vLane)); A('v_lshl_add_u32 v25, v25, 2, %s' % sr(t0))
        for nt2 in range(2):
            k_, v_ = aG0 + nt2 * 8, aG1 + nt2 * 8
            for mt in range(2):
                for x in phi_l(k_ + mt * 4, k_ + mt * 2, tmp): A(x)
            for mt in range(2):
                for x in cvt2(v_ + mt * 2, v_ + mt * 4): A(x)
            A(lambda k_=k_, v_=v_: mfma(v_ + 4, k_, v_, '0'))
            A(lambda k_=k_: mfma(k_ + 4, ones, k_, '0'))
        A('s_bfe_u32 %s, %s, 0x10001' % (sr(t0), sr(sW))); A('s_lshl2_add_u32 %s, %s, %s' % (sr(t0), sr(t0), sr(sH2)))
        A('s_lshl_b32 %s, %s, 10' % (sr(t0), sr(t0))); A('s_add_u32 %s, %s, %d' % (sr(t0), sr(t0), S4 + 2048))
        A('v_add_u32 %s, %s, %s' % (vr(tmp), sr(t0), vr(vL16)))
        A('v_lshlrev_b32 %s, 2, %s' % (vr(tmp + 1), vr(vLane))); A('v_add_u32 %s, %d, %s' % (vr(tmp + 1), ZB, vr(tmp + 1)))
        for nt2 in range(2):
            A('ds_write_b128 v24, %s offset:%d' % (vr(aG1 + nt2 * 8 + 4, 4), nt2 * 1024))
            A('ds_write_b32 v25, %s offset:%d' % (vr(aG0 + nt2 * 8 + 4), nt2 * 64))
    else:
        A('s_and_b32 %s, %s, 3' % (sr(t0), sr(sV))); A('s_mul_i32 %s, %s, 7' % (sr(t0), sr(t0)))
        A('s_add_u32 %s, %s, %s' % (sr(t0), sr(t0), sr(sH2))); A('s_lshl_b32 %s, %s, 10' % (sr(t0), sr(t0)))
        for mt in range(2):
            A('s_add_u32 %s, %s, %s' % (sr(t1 + mt), sr(t0), sr(sAb + mt)))
        for grp, a_ in ((0, aG0), (1, aG1)):
            for mt in range(2):
                f = vBias + mt * 4
                for nt2 in range(2):
                    for x in h_l(a_ + (nt2 * 2 + mt) * 4, f + 2 * nt2): A(x)
                A(st4(f, t1 + mt, grp * 2048, 'h'))
    def p2_setup():
        A('v_lshrrev_b32 v29, 2, %s' % vr(vLane)); A('s_lshl_b32 %s, %s, 13' % (sr(t0), sr(sA_)))
        A('v_lshl_add_u32 v29, v29, 7, v31'); A('v_add_u32 v29, %s, v29' % sr(t0))
        for u in range(4):
            A('s_add_u32 %s, %s, %d' % (sr(t0), sr(sA_), u)); A('s_and_b32 %s, %s, 3' % (sr(t0), sr(t0)))
            A('s_lshl_b32 %s, %s, 5' % (sr(t1), sr(t0))); A('v_xor_b32 %s, %s, v29' % (vr(vBa + u), sr(t1)))
            A('s_lshl2_add_u32 %s, %s, %s' % (sr(t1), sr(sH2), sr(t0))); A('s_mul_i32 %s, %s, 6144' % (sr(t1), sr(t1)))
            A('s_add_u32 %s, %s, %d' % (sr(t1), sr(t1), S(DS['R1']) + max(u - 1, 0) * 2048))
            A('v_add_u32 %s, %s, %s' % (vr(vRr if u == 0 else vRw + u - 1), sr(t1), vr(vL16)))
            A('v_add_u32 %s, 0x10000, %s' % (vr(vBa + 4 + u), vr(vBa + u)))
        A('v_add_u32 %s, 0x1000, %s' % (vr(vA1), vr(vL16)))

    per = 4 if KV else 8
    for k in range(16):
        if (k + 1) % per == 0 and k + 1 < 16:
            q = (k + 1) // per
            q_drain(vq)
            tags = [('p2', q)]
            if KV and q == 2: tags.append('kvp')
            if KV and q == 3: tags += ['D0', 'D1']
            if not KV: tags += ['h', 'D0', 'D1']
            barrier('P%d' % q, tags)
            if KV and q == 1:
                tk, tz = aG0, aG1
                for aa in range(4): I('ds_read_b128 %s, %s offset:%d' % (vr(tk + aa * 4, 4), vr(vBias), aa * 8192))
                for aa in range(4): I('ds_read_b32 %s, %s offset:%d' % (vr(tz + aa), vr(vBias + 1), aa * 256))
                A('s_lshl4_add_u32 %s, %s, %s' % (sr(t0), sr(sV), sr(sI))); A('s_and_b32 %s, %s, 3' % (sr(t1), sr(sW)))
                A('s_lshl2_add_u32 %s, %s, %s' % (sr(t1), sr(t0), sr(t1))); A('s_lshl_b32 %s, %s, 10' % (sr(t1), sr(t1)))
                A('s_add_u32 %s, %s, 0x%x' % (sr(t1), sr(t1), WS_KVP))
                A('s_lshl_b32 %s, %s, 10' % (sr(t2), sr(sV))); A('s_add_u32 %s, %s, %s' % (sr(t2), sr(t2), sr(sI)))
                A('s_lshl_b32 %s, %s, 2' % (sr(t2), sr(t2))); A('s_add_u32 %s, %s, 0x%x' % (sr(t2), sr(t2), WS_ZP))
                A('v_lshlrev_b32 v24, 6, %s' % vr(vLane))
                for x in add4(tk, tk, tk + 4) + add4(tk + 8, tk + 8, tk + 12) + add4(tk, tk, tk + 8): A(x)
                A(['s_cmp_lt_u32 %s, 4' % sr(sW), 's_cselect_b64 exec, -1, 0', st4(tk, t1, 0, 'kvp'), 's_mov_b64 exec, -1'])
                A('v_add_f32 %s, %s, %s' % (vr(tz), vr(tz), vr(tz + 1))); A('v_add_f32 %s, %s, %s' % (vr(tz + 2), vr(tz + 2), vr(tz + 3)))
                A('v_add_f32 %s, %s, %s' % (vr(tz), vr(tz), vr(tz + 2)))
                A(['s_cmp_eq_u32 %s, 4' % sr(sW), 's_cselect_b64 exec, -1, 0',
                   lambda: I('buffer_store_dword %s, v24, %s, %s offen sc1' % (vr(tz), sr(dWS, 4), sr(t2)), 'kvp'), 's_mov_b64 exec, -1'])
                p2_setup()
            if KV and q == 2:
                flag_store(vGa, sI, 32, '0xffff', 24)
            if KV and q == 3: lq.extend(b_reads(0, 1))
            if not KV:
                I('s_and_b32 %s, %s, 3' % (sr(t5), sr(sV)))
                I('s_lshl_b32 %s, 0x5555, %s' % (sr(t2), sr(sP)))
                flag_store(vMr, t5, M_EARLY, sr(t2), 24)
                p2_setup()
        else:
            e.wait_lg()
        if k == H1S:
            stamp('P'); vm_drain('p1'); poll_check(0, '0xf'); ev.add('hf1'); stamp('P'); stamp('hf1')
        if not KV and k == 11:
            q_drain(vq); lq.extend(b_reads(0, 1))
        if k == 14: lq.extend(b_reads(2, 3))
        nv = opt('nv2a', 4) if (KV and k < 5) else opt('nv2', 2 if KV else 3)
        seq(p2_mf(k), p2_reads(k + 1) if k < 15 else [], vmk=opt('vk2', 2), nv=nv, nl=(2 if k < 14 else 3))
        ev.add('p2s%d' % k); stamp('k%d' % k)
    q_drain(vq); q_drain(lq)
    stamp(); stamp('P')
    if not KV:
        for _ in range(4): stamp('P')
    barrier('X1', None if KV else ['pk'])
    def fin_setup():
        A('v_and_b32 v24, 15, %s' % vr(vLane)); A('s_lshl1_add_u32 %s, %s, %s' % (sr(t0), sr(sP), sr(sH2)))
        A('s_lshl2_add_u32 %s, %s, %s' % (sr(t0), sr(sI), sr(t0))); A('s_lshl_b32 %s, %s, 5' % (sr(t0), sr(t0)))
        A('v_add_u32 v24, %s, v24' % sr(t0))
        A('v_lshlrev_b32 v16, 2, v24')
        A('s_lshl2_add_u32 %s, %s, %s' % (sr(t0), sr(sJ), sr(sA_))); A('s_lshl_b32 %s, %s, 5' % (sr(t0), sr(t0)))
        A('v_lshl_add_u32 v30, %s, 3, %s' % (vr(vG_), sr(t0)))
        A('global_load_dwordx2 %s, v30, %s' % (vr(vB2, 2), sr(pB2, 2)))
        A('v_lshl_add_u32 %s, v24, 10, v30' % vr(vOo))
        A('s_mov_b32 %s, 0x%x' % (sr(sSl), WS_GB))
    if KV:
        A('s_and_b32 %s, %s, 3' % (sr(t0), sr(sV))); A('s_mul_i32 %s, %s, 7' % (sr(t0), sr(t0)))
        A('s_add_u32 %s, %s, %s' % (sr(t0), sr(t0), sr(sH2))); A('s_add_u32 %s, %s, 4' % (sr(t0), sr(t0)))
        A('s_lshl_b32 %s, %s, 10' % (sr(t0), sr(t0)))
        for mt in range(2):
            f = vBias + mt * 4
            A('s_add_u32 %s, %s, %s' % (sr(t1), sr(t0), sr(sAb + mt)))
            for nt2 in range(2):
                for x in h_l(aG2 + (nt2 * 2 + mt) * 4, f + 2 * nt2): A(x)
            A(st4(f, t1, 0, 'h'))
        A('s_lshl1_add_u32 %s, %s, %s' % (sr(t0), sr(sC), sr(sH2))); A('s_mul_i32 %s, %s, %d' % (sr(t0), sr(t0), 7 * 1024))
        A('s_add_u32 %s, %s, %d' % (sr(t0), sr(t0), 6 * 1024)); A('s_add_u32 %s, %s, %s' % (sr(t1), sr(t0), sr(sAb)))
        for nt2 in range(2):
            for x in h_l(aG3 + nt2 * 4, aG3 + 2 * nt2): A(x)
        A(st4(aG3, t1, 0, 'h'))
        if opt('epi2first', 1): q_drain(vq)
    else:
        poll_check(128, '0xffff')
        I('s_lshl1_add_u32 %s, %s, %s' % (sr(t0), sr(sV), sr(sH2)))
        I('s_lshl_b32 %s, %s, 11' % (sr(t2), sr(t0)))
        I('s_add_u32 %s, %s, 0x%x' % (sr(t2), sr(t2), WS_ZP))
        I('s_lshl_b32 %s, %s, 5' % (sr(t0), sr(t0)))
        I('s_add_u32 %s, %s, %s' % (sr(t0), sr(t0), sr(sA_)))
        I('s_lshl_b32 %s, %s, 10' % (sr(t1), sr(t0)))
        I('s_add_u32 %s, %s, 0x%x' % (sr(t1), sr(t1), WS_KVP))
        I('v_and_b32 v24, 15, %s' % vr(vLane))
        I('v_lshlrev_b32 v25, 6, v24')
        I('v_lshl_add_u32 v25, %s, 4, v25' % vr(vG_))
        for nt2 in range(2):
            I('buffer_load_dwordx4 %s, v25, %s, %s offen offset:%d sc1' % (vr(88 + 4 * nt2, 4), sr(dWS, 4), sr(t2), nt2 * 1024))
        for k in range(8):
            I('buffer_load_dwordx4 %s, %s, %s, %s offen sc1' % (vr(32 + 4 * k, 4), vr(vL16), sr(dWS, 4), sr(t1)))
            if k < 7: I('s_add_u32 %s, %s, 4096' % (sr(t1), sr(t1)))
        A('s_lshl_b32 %s, %s, 6' % (sr(t0), sr(sMt))); A('s_add_u32 %s, %s, %d' % (sr(t1), sr(t0), QB + 8192))
        A('v_lshl_add_u32 v13, v24, 2, %s' % sr(t1))
        A('v_lshlrev_b32 v15, 2, v24')
        A('v_mul_f32 %s, %s, %s' % (vr(vG0), sr(sLog2e), vr(aG3)))
        A('v_exp_f32_e64 %s, -%s' % (vr(vG0), vr(vG0))); A('v_add_f32 %s, 1.0, %s' % (vr(vG0), vr(vG0)))
        A('v_rcp_f32 %s, %s' % (vr(vG0), vr(vG0))); A('ds_write_b32 v13, %s' % vr(vG0)); A('v_xor_b32 v13, 64, v13')
        A('s_lshl_b32 %s, %s, 9' % (sr(t1), sr(sI))); A('s_add_u32 %s, %s, %s' % (sr(t0), sr(t0), sr(t1)))
        A('s_add_u32 %s, %s, 0x%x' % (sr(t0), sr(t0), WS_GB))
        A(['s_cmp_eq_u32 %s, %s' % (sr(sMt), sr(sV)), 's_cselect_b64 exec, 0xffff, 0',
           lambda: I('buffer_store_dword %s, v15, %s, %s offen sc1' % (vr(vG0), sr(dWS, 4), sr(t0)), 'h'), 's_mov_b64 exec, -1'])
        pq = aG2
        for j_ in range(4):
            for x in phi_l(aG2 + j_ * 4, pq + j_ * 2, aG3 + 4): A(x)
        A('v_mov_b32 v14, 1.0')
        zD, zT, sc_ = 72, 80, 84
        for m in range(4):
            for nt2 in range(2):
                A('v_mfma_f32_16x16x4_f32 %s, %s, v14, %s' % (vr(zD + nt2 * 4, 4), vr(88 + 4 * nt2 + m), '0' if m == 0 else vr(zD + nt2 * 4, 4)))
        A('s_lshl_b32 %s, %s, 10' % (sr(t0), sr(sW)))
        A('s_add_u32 %s, %s, %d' % (sr(t0), sr(t0), QB)); A('v_add_u32 v14, %s, %s' % (sr(t0), vr(vL16)))
        A('s_lshl_b32 %s, %s, 12' % (sr(t0), sr(sH2))); A('s_add_u32 %s, %s, %d' % (sr(t0), sr(t0), QB))
        A('v_add_u32 v15, %s, %s' % (sr(t0), vr(vL16)))
        for st_ in (1, 2, 4):
            for k in range(0, 8, 2 * st_):
                for x in add4(32 + 4 * k, 32 + 4 * k, 32 + 4 * (k + st_)): A(x)
        A('ds_write_b128 v14, v[32:35]')
        for nt2 in range(2):
            for x in cvt2(zT + nt2 * 2, zD + nt2 * 4): A(x)
        m16 = lambda d, a, b: 'v_mfma_f32_16x16x16_bf16 %s, %s, %s, 0' % (vr(d, 4), vr(a, 2), vr(b, 2))
        for j_ in range(4): A(m16(240 + j_ * 4, zT + (j_ >> 1) * 2, pq + j_ * 2))
        A('s_nop 3')
        for j_ in range(4): A('v_add_f32 %s, %s, %s' % (vr(sc_ + j_), sr(sEps), vr(240 + j_ * 4)))
        for j_ in range(4): A('v_rcp_f32 %s, %s' % (vr(sc_ + j_), vr(sc_ + j_)))
    stamp(); stamp('e2')
    if not KV: vm_add(slab_thunks('E1'), 'E1', 'X1')
    for n in (6, 7): vm_add(a_load(n), ('a', n), *a_need(n))
    vm_add(slab_thunks('E2'), 'E2', 'X1')
    PH2 = opt('ph2', 6); PH3 = opt('ph3', 8); POF = opt('pof', 11); X3S = 8; X4S = opt('x4', 12)
    vm_add([lambda: poll_issue(0, 'p2')], 'p2', 'f%d' % (PH2 - 2))
    for n in range(8, 11): vm_add(a_load(n), ('a', n), *a_need(n))
    vm_add([lambda: poll_issue(0, 'p3')], 'p3', 'f%d' % (PH3 - 2), 'hf2')
    for n in range(11, 14): vm_add(a_load(n), ('a', n), *a_need(n))
    vm_add(slab_thunks('W0'), 'W0', 'X3')
    vm_add(slab_thunks('W1'), 'W1', 'X3')
    vm_add([lambda: poll_issue(0, 'p4')], 'p4', 'f%d' % (POF - 2), 'hf3')
    vm_add(['buffer_load_dword %s, v16, %s, %s offen offset:%d sc1' % (vr(vOmf + mt), sr(dWS, 4), sr(sSl), mt * 64) for mt in range(2)], 'g', 'of')
    for n in range(14, 18): vm_add(a_load(n), ('a', n), *a_need(n))
    ex = accS(1, 0)
    vm_add(['buffer_load_dwordx4 %s, %s, %s, %s offen offset:%d sc1' % (vr(ex + 4 * k, 4), vr(vL16), sr(dWS, 4), sr(sEx), k * 1024) for k in range(2)], 'exl', 'of')

    def red_w(acc):
        return ['ds_write_b128 %s, %s offset:%d' % (vr(vRw + u - 1), vr(acc(u, mt), 4), mt * 1024) for u in range(1, 4) for mt in range(2)]
    def red_r(acc):
        return ['ds_read_b128 %s, %s offset:%d' % (vr(acc(u, mt), 4), vr(vRr), (u - 1) * 2048 + mt * 1024) for u in range(1, 4) for mt in range(2)]
    def red_a(acc, mt):
        return add4(acc(0, mt), acc(0, mt), acc(1, mt)) + add4(acc(2, mt), acc(2, mt), acc(3, mt)) + add4(acc(0, mt), acc(0, mt), acc(2, mt))
    for n, (base_, ls) in enumerate(steps):
        acc = accS if n < 4 else accO
        if n == 4:
            q_drain(vq); q_drain(lq)
            run(red_w(accS))
            barrier('X2', ['h', 'E0', 'E1'] if KV else ['E0'])
            stamp()
            if KV:
                flag_store(vMr, sV, M_LATE, '0xffff', 24)
                run(red_r(accS))
                lq.extend(b_reads(8, 9, 10))
            else:
                I('ds_read_b32 %s, v13' % vr(vG1))
                for k in range(4): I('ds_read_b128 %s, v15 offset:%d' % (vr(240 + 4 * k, 4), k * 1024))
                run(red_r(accS))
                kvT = 72
                A('s_lshl3_add_u32 %s, %s, %s' % (sr(t1), sr(sI), sr(sMt))); A('s_lshl3_add_u32 %s, %s, %s' % (sr(t1), sr(t1), sr(sV)))
                A('s_lshl1_add_u32 %s, %s, %s' % (sr(t1), sr(t1), sr(sH2))); A('s_lshl_b32 %s, %s, 10' % (sr(t1), sr(t1)))
                A('s_add_u32 %s, %s, 0x%x' % (sr(t1), sr(t1), WS_OB)); A('s_xor_b32 %s, %s, 0x4000' % (sr(t2), sr(t1)))
                for j_ in range(4): A('v_mul_f32 %s, %s, %s' % (vr(sc_ + j_), vr(sc_ + j_), vr(vG0 + (j_ & 1))))
                for nt2 in range(2):
                    for x in add4(240 + nt2 * 8, 240 + nt2 * 8, 244 + nt2 * 8) + cvt2(kvT + nt2 * 2, 240 + nt2 * 8): A(x)
                for j_ in range(4): A(m16(240 + j_ * 4, kvT + (j_ >> 1) * 2, pq + j_ * 2))
                for mt in range(2):
                    for nt2 in range(2):
                        j_ = nt2 * 2 + mt
                        for c_ in range(4): A('v_mul_f32 %s, %s, %s' % (vr(240 + j_ * 4 + c_), vr(240 + j_ * 4 + c_), vr(sc_ + j_)))
                        for x in cvt2(88 + mt * 4 + nt2 * 2, 240 + j_ * 4): A(x)
                    A(st4(88 + mt * 4, t1 + mt, 0, 'h'))
                if opt('ofirst', 1): q_drain(vq)
                A(lambda: lq.extend(b_reads(8, 9)))
            for mt in range(2):
                for x in red_a(accS, mt): A(x)
                A(st4(accS(0, mt), sEx, mt * 1024, 'ex'))
            A('s_xor_b32 %s, %s, 0x4000' % (sr(sEx), sr(sEx)))
            d = S(DS['R2']) - S(DS['R1'])
            for k in range(4): A('v_add_u32 %s, %d, %s' % (vr(vRw + k), d, vr(vRw + k)))
            fin_setup()
        if n == PH2:
            I('s_lshl_b32 %s, %s, 2' % (sr(t5), sr(sP))); I('s_lshl_b32 %s, 0xf0, %s' % (sr(t5), sr(t5)))
            vm_drain('p2'); poll_check(0, sr(t5)); ev.add('hf2'); stamp(); stamp('hf2')
        if n == X3S:
            q_drain(vq); q_drain(lq)
            barrier('X3', ['h', 'ex', 'E1', 'E2'])
            if not KV: flag_store(vMr, sV, M_O, '0xffff', 24)
            I('s_lshl1_add_u32 %s, %s, %s' % (sr(t5), sr(sJ), sr(sP))); I('s_xor_b32 %s, %s, 1' % (sr(t5), sr(t5)))
            I('s_lshl_b32 %s, 1, %s' % (sr(t5), sr(t5)))
            flag_store(vMr, None, M_EX, sr(t5), 24)
            lq.extend(b_reads(11, 12, 13) if KV else b_reads(10, 11, 12, 13))
        if n == PH3:
            vm_drain('p3'); poll_check(0, '0xff0'); ev.add('hf3'); stamp('hf3')
        if n == POF:
            vm_drain('p4'); poll_check(0, '0x1ff000'); ev.add('of'); stamp(); stamp('of')
        if n == X4S:
            q_drain(lq)
            barrier('X4', ['W0', 'W1'])
            lq.extend(b_reads(14, 15, 16, 17))
        if n == 14:
            q_drain(vq); vm_drain('g')
            for mt in range(2): I('v_sub_f32 %s, 1.0, %s' % (vr(vOmf + mt), vr(vOmf + mt)))
            for mt in range(2):
                for u in range(4):
                    for c_ in range(4): I('v_mul_f32 %s, %s, %s' % (vr(accO(u, mt) + c_), vr(accO(u, mt) + c_), vr(vOmf + mt)))
            bb = accS(0, 0)
            for x in bias_l([bb], vB2): A(x)
        vm_drain(('a', n))
        if n >= 8:
            need = set(range(BREG[n], BREG[n] + 16))
            import re as _re
            def hits(x):
                t_ = ' '.join(x) if isinstance(x, list) else x
                return any(int(m) in need for m in _re.findall(r'tr_b16 v\[(\d+):', t_))
            while any(hits(x) for x in lq): run(lq.popleft())
        mf = [(acc(u, mt), BREG[n] + 4 * u, Ar(n, mt), '0' if n in (0, 4) else acc(u, mt)) for mt in range(2) for u in range(4)]
        if n in (3, 17): mf = [m for m in mf if m[0] not in (acc(0, 0), acc(0, 1))] + [m for m in mf if m[0] in (acc(0, 0), acc(0, 1))]
        seq(mf, vmk=opt('vk3', 2), nv=(opt('nv3q', 4) if (not KV and n < 4) else opt('nv3', 2)), nl=2)
        ev.add('f%d' % n); stamp('f%d' % n)
    vm_drain('exl')
    assert not vmq and not vq and not lq
    stamp()
    run(red_w(accO))
    for j_ in range(8): I('v_add_f32 %s, %s, %s' % (vr(ex + j_), vr(ex + j_), vr(bb + (j_ & 3))))
    for j_ in range(8):
        I('v_fma_f32 %s, %s, %s, %s' % (vr(accO(0, 0) + j_), vr(ex + j_), vr(vOmf + (j_ >> 2)), vr(accO(0, 0) + j_)))
    I('s_mov_b32 %s, 0x4000' % sr(t0))
    barrier('X5')
    run(red_r(accO))
    for mt in range(2):
        run(red_a(accO, mt))
        run(cvt2(bb + 4 + mt * 2, accO(0, mt)))
        I('buffer_store_dwordx2 %s, %s, %s, %s offen' % (vr(bb + 4 + mt * 2, 2), vr(vOo), sr(dOUT, 4), '0' if mt == 0 else sr(t0)))
    if PROF:
        e.wait_vm_all()
        stamp('end')
        for k in range(nstamp[0]): I('v_writelane_b32 v28, %s, %d' % (sr(sStamp + k), k))
        I('s_getreg_b32 %s, hwreg(HW_REG_XCC_ID)' % sr(t0))
        I('v_writelane_b32 v28, %s, 15' % sr(t0))
        I('s_lshl3_add_u32 %s, s2, %s' % (sr(t0), sr(sW)))
        I('s_lshl_b32 %s, %s, 6' % (sr(t0), sr(t0)))
        I('s_add_u32 %s, %s, 0x%x' % (sr(t0), sr(t0), WS_PROF))
        I('s_mov_b64 exec, 0xffff')
        I('buffer_store_dword v28, %s, %s, %s offen' % (vr(vPo), sr(dWS, 4), sr(t0)))
    I('s_endpgm')

program('KV')
e.restore(st0); nstamp[0] = ns0
e.label('L_roleQ', flush=False)
program('Q')
e.label('L_end', flush=False)
I('s_endpgm')

hdr = open('cdna_kernels/%s.s.ref' % NAME).read().split('; Override launch')[0]
src = hdr + '; @launch grid=(256,1,1) block=(512,1,1) lds=163840\n'
src += '.amdgcn_target "amdgcn-amd-amdhsa--gfx950"\n.text\n.globl %s_kernel\n.p2align 8\n.type %s_kernel,@function\n%s_kernel:\n' % (NAME, NAME, NAME)
src += e.text()
src += '''.section .rodata,"a"
.p2align 6
.amdhsa_kernel %s_kernel
  .amdhsa_next_free_vgpr 256
  .amdhsa_next_free_sgpr 102
  .amdhsa_accum_offset 256
  .amdhsa_group_segment_fixed_size 0
  .amdhsa_kernarg_size 96
  .amdhsa_user_sgpr_count 2
  .amdhsa_user_sgpr_kernarg_segment_ptr 1
  .amdhsa_system_sgpr_workgroup_id_x 1
.end_amdhsa_kernel
''' % NAME
open(OUT, 'w').write(src)
print('wrote', OUT, 'instrs', e.ninstr, 'nops', e.nop_count, 'stamps', nstamp[0])
```

```python
import sys
from asmlib import Em, vr, sr

NAME = 'gated_mix__linear_attn_block__dense_activation_squared_relu__prompt'
PROF = '--prof' in sys.argv
OPT = dict(a[2:].split('=') for a in sys.argv[1:] if a.startswith('--') and '=' in a)
OUT = [a for a in sys.argv[1:] if not a.startswith('--')]
OUT = OUT[0] if OUT else 'cdna_kernels/%s.s' % NAME
HST = OPT.get('hst', 'sc1')

S = lambda k: k * 32768
S4 = S(4); GATE = S4; GS = S4 + 1024; ZB = S4 + 4096
WS_KVF = 0x1000; WS_HF = 0x2000; WS_OF = 0x3000; WS_XF = 0x4000; WS_PROF = 0x10000
WS_KVP = 0x100000; WS_ZP = 0x180000; WS_EX = 0x200000; WS_OB = 0x600000; WS_AB = 0x800000
P_QKV = 3072; P_W1 = 3584
LOG2E = 0x3fb8aa3b; EPS = 0x358637bd
SH = 4096

sW, sP, sI, sJ, sC, sRr, sRot, sA_, sH2, sT = 3, 4, 5, 6, 7, 8, 9, 10, 11, 12
t0, t1, t2 = 13, 14, 15
pX, pQKV, pWO, pBX, pW1, pB1, pW2, pB2, pG, pOUT, pDBG, pWS = 16, 18, 20, 22, 24, 26, 28, 30, 32, 34, 36, 38
dX, dQKV, dW1, dW2, dWO, dWS, dOUT = 40, 44, 48, 52, 56, 60, 64
sM4, sKx, sV, sHB = 68, 69, 70, 71
sAb = 72
sSl = 74
t3, t4, t5 = 77, 78, 79
sA2 = 80
sLog2e, sEps = 22, 23
sSpin = 86; sMt = 87
sStamp = 88

vLane, vL16, vG_ = 1, 2, 3
vXa = 4; vWa = 12; vGa = 16; vD = 17; vE = 21; vSo = 23
vG0, vG1, vOm0, vOm1, vEp = 24, 25, 26, 27, 28
vBias = 32
aG0, aG1, aGt = 40, 56, 72
vF = 76
vT2 = 116
Xf = lambda t, s, mt: 128 + ((t * 2 + s) * 2 + mt) * 4

e = Em()
I = e.i
nstamp = [0]
def stamp(grp='main'):
    if not PROF or grp != OPT.get('st', 'main'): return
    k = nstamp[0]; nstamp[0] += 1
    assert k < 12
    e.wait_lg_all()
    I('%s s[100:101]' % OPT.get('clk', 's_memrealtime'))
    e.wait_lg_all()
    I('s_mov_b32 %s, s100' % sr(sStamp + k))

def srd(d, p, nbytes, shift=0):
    if shift:
        I('s_sub_u32 %s, %s, %d' % (sr(d), sr(p), shift))
        I('s_subb_u32 %s, %s, 0' % (sr(d + 1), sr(p + 1)))
    else:
        I('s_mov_b32 %s, %s' % (sr(d), sr(p)))
        I('s_mov_b32 %s, %s' % (sr(d + 1), sr(p + 1)))
    I('s_mov_b32 %s, 0x%x' % (sr(d + 2), nbytes + shift))
    I('s_mov_b32 %s, 0x20000' % sr(d + 3))

def set_m0(slotbase): I('s_add_u32 m0, %s, %d' % (sr(sM4), slotbase))
def dma(voff, d, soff, imm, tag):
    I('buffer_load_dwordx4 %s, %s, %s offen offset:%d lds' % (vr(voff), sr(d, 4), soff, imm), tag)
def mfma(d, a, b, c):
    I('v_mfma_f32_16x16x32_bf16 %s, %s, %s, %s' % (vr(d, 4), vr(a, 4), vr(b, 4), c if isinstance(c, str) else vr(c, 4)))
def weave(mf, fill):
    fill = sorted(fill, key=lambda x: x[0])
    k = 0
    def run(upto):
        nonlocal k
        while k < len(fill) and fill[k][0] <= upto:
            f = fill[k][1]; k += 1
            I(f) if isinstance(f, str) else f()
    run(-1)
    for n, m in enumerate(mf):
        mfma(*m); run(n)
    run(10 ** 9)
def spread(lst, per, start=-1): return [(start + n // per, x) for n, x in enumerate(lst)]

lab_n = [0]
def newlab(p): lab_n[0] += 1; return 'L_%s%d' % (p, lab_n[0])

def poll_issue(voff, soff, lo):
    I('s_mov_b64 exec, 0x%x' % lo)
    I('buffer_load_dword %s, %s, %s, %s offen sc1' % (vr(vEp), vr(voff), sr(dWS, 4), sr(soff)))
    I('s_mov_b64 exec, -1')
def poll_check(voff, soff, lo):
    ok = newlab('ok'); lp = newlab('sp')
    I('v_cmp_ne_u32 vcc, %s, %s' % (sr(sT), vr(vEp)))
    I('s_and_b32 %s, vcc_lo, 0x%x' % (sr(sSpin), lo))
    I('s_cbranch_scc0 %s' % ok)
    st = e.save()
    I('s_mov_b32 %s, 0' % sr(sSpin))
    I('s_mov_b64 exec, 0x%x' % lo)
    e.label(lp, flush=False)
    I('buffer_load_dword %s, %s, %s, %s offen sc1' % (vr(vEp), vr(voff), sr(dWS, 4), sr(soff)))
    e.wait_vm_all()
    I('v_cmp_ne_u32 vcc, %s, %s' % (sr(sT), vr(vEp)))
    I('s_add_u32 %s, %s, 1' % (sr(sSpin), sr(sSpin)))
    I('s_cbranch_vccz %s_d' % lp)
    I('s_cmp_lt_u32 %s, 0x100000' % sr(sSpin))
    I('s_cbranch_scc1 %s' % lp)
    e.label(lp + '_d', flush=False)
    I('s_mov_b64 exec, -1')
    e.restore(st)
    e.label(ok, flush=False)
def flag_store(soff, vtmp, wave0_only=True):
    I('v_mov_b32 %s, %s' % (vr(vtmp), sr(sT)))
    if wave0_only:
        I('s_cmp_eq_u32 %s, 0' % sr(sW))
        I('s_cselect_b64 exec, 1, 0')
    else:
        I('s_mov_b64 exec, 1')
    I('buffer_store_dword %s, %s, %s, %s offen sc1' % (vr(vtmp), vr(vL16), sr(dWS, 4), sr(soff)))
    I('s_mov_b64 exec, -1')

I('s_cmp_ge_u32 s2, 256')
I('s_cbranch_scc1 L_end')
I('s_load_dwordx16 s[16:31], s[0:1], 0')
I('s_load_dwordx8 s[32:39], s[0:1], 64')
if PROF:
    I('%s s[100:101]' % OPT.get('clk', 's_memrealtime')); nstamp[0] = 1
I('v_lshrrev_b32 v29, 6, v0')
I('v_and_b32 %s, 63, v0' % vr(vLane))
I('v_readfirstlane_b32 %s, v29' % sr(sW))
I('s_and_b32 %s, s2, 1' % sr(sP))
I('s_bfe_u32 %s, s2, 0x20001' % sr(t0))
I('s_lshr_b32 %s, s2, 6' % sr(t1))
I('s_lshl2_add_u32 %s, %s, %s' % (sr(sI), sr(t0), sr(t1)))
I('s_bfe_u32 %s, s2, 0x30003' % sr(sJ))
I('s_lshl1_add_u32 %s, %s, %s' % (sr(sRot), sr(t1), sr(sJ)))
I('s_and_b32 %s, %s, 7' % (sr(sRot), sr(sRot)))
I('s_lshl_b32 %s, %s, 7' % (sr(sKx), sr(sRot)))
I('s_lshl_b32 %s, %s, 12' % (sr(sM4), sr(sW)))
I('v_lshrrev_b32 v29, 3, %s' % vr(vLane))
I('v_and_b32 v30, 7, %s' % vr(vLane))
I('v_lshrrev_b32 %s, 4, %s' % (vr(vG_), vr(vLane)))
I('s_lshl3_add_u32 %s, %s, %s' % (sr(t0), sr(sI), sr(sW)))
I('s_lshl_b32 %s, %s, 14' % (sr(t0), sr(t0)))
I('s_add_u32 %s, %s, %d' % (sr(t0), sr(t0), SH))
I('v_xor_b32 v31, v30, %s' % vr(vG_))
I('v_lshlrev_b32 v31, 4, v31')
I('v_lshl_add_u32 v31, v29, 10, v31')
I('v_add_u32 %s, %s, v31' % (vr(vD), sr(t0)))
I('v_xor_b32 %s, 64, %s' % (vr(vD + 1), vr(vD)))
I('v_add_u32 %s, %d, %s' % (vr(vD + 1), 8192 - 1024, vr(vD + 1)))
I('s_lshr_b32 %s, %s, 2' % (sr(sC), sr(sJ)))
I('s_and_b32 %s, %s, 3' % (sr(sRr), sr(sJ)))
I('s_lshr_b32 %s, %s, 1' % (sr(sA_), sr(sW)))
I('s_and_b32 %s, %s, 1' % (sr(sH2), sr(sW)))
I('s_lshl1_add_u32 %s, %s, %s' % (sr(t0), sr(sP), sr(sC)))
I('s_mul_i32 %s, %s, 7' % (sr(sHB), sr(t0)))
I('s_and_b32 %s, %s, 1' % (sr(t1), sr(sRr)))
I('s_lshl1_add_u32 %s, %s, %s' % (sr(sV), sr(t0), sr(t1)))
I('s_xor_b32 %s, %s, %s' % (sr(sMt), sr(sW), sr(t1)))
I('v_and_b32 v116, 2, v29')
I('s_lshl_b32 %s, %s, 2' % (sr(t0), sr(sH2)))
I('v_xor_b32 v116, v30, v116')
I('v_xor_b32 v116, %s, v116' % sr(t0))
I('v_lshlrev_b32 v116, 4, v116')
I('s_lshl_b32 %s, %s, 3' % (sr(t0), sr(sW)))
I('v_add_u32 v117, %s, v29' % sr(t0))
I('v_lshlrev_b32 %s, 4, %s' % (vr(vL16), vr(vLane)))
I('s_or_b32 %s, s2, %s' % (sr(t0), sr(sW)))
set_m0(S(0))
e.wait_lg_all()
if PROF: I('s_mov_b32 %s, s100' % sr(sStamp))
srd(dX, pX, 2048 * 1024, SH)
dma(vD, dX, sr(sKx), 0, ('c', 0))
dma(vD + 1, dX, sr(sKx), 1024, ('c', 0))
I('s_cmp_eq_u32 %s, 0' % sr(t0))
I('s_cselect_b64 exec, 1, 0')
I('global_load_dword %s, %s, %s sc0 sc1' % (vr(vEp), vr(vL16), sr(pWS, 2)))
I('s_mov_b64 exec, -1')
srd(dQKV, pQKV, 512 * P_QKV, SH)
srd(dW1, pW1, 512 * P_W1, SH)
I('s_cmp_ge_u32 %s, 2' % sr(sRr))
I('s_cbranch_scc1 L_roleQ')
st0 = e.save(); ns0 = nstamp[0]

def bias_init(acc_regs, pk):
    for a_ in acc_regs:
        I('v_lshlrev_b32 %s, 16, %s' % (vr(a_), vr(pk)))
        I('v_and_b32 %s, 0xffff0000, %s' % (vr(a_ + 1), vr(pk)))
        I('v_lshlrev_b32 %s, 16, %s' % (vr(a_ + 2), vr(pk + 1)))
        I('v_and_b32 %s, 0xffff0000, %s' % (vr(a_ + 3), vr(pk + 1)))

def h_vals(src, dst2, om):
    for k in range(4): I('v_max_f32 %s, 0, %s' % (vr(src + k), vr(src + k)))
    for k in range(4): I('v_mul_f32 %s, %s, %s' % (vr(vT2 + k), vr(src + k), vr(om)))
    for k in range(4): I('v_mul_f32 %s, %s, %s' % (vr(src + k), vr(src + k), vr(vT2 + k)))
    I('v_cvt_pk_bf16_f32 %s, %s, %s' % (vr(dst2), vr(src), vr(src + 1)))
    I('v_cvt_pk_bf16_f32 %s, %s, %s' % (vr(dst2 + 1), vr(src + 2), vr(src + 3)))

def phi4(src, dst2):
    for k in range(4): I('v_mul_f32 %s, %s, %s' % (vr(vT2 + k), sr(sLog2e), vr(src + k)))
    for k in range(4): I('v_exp_f32_e64 %s, %s clamp' % (vr(vT2 + k), vr(vT2 + k)))
    for k in range(4): I('v_max_f32 %s, 0, %s' % (vr(src + k), vr(src + k)))
    for k in range(4): I('v_add_f32 %s, %s, %s' % (vr(src + k), vr(src + k), vr(vT2 + k)))
    for k in range(4): I('v_add_f32 %s, %s, %s' % (vr(src + k), sr(sEps), vr(src + k)))
    I('v_cvt_pk_bf16_f32 %s, %s, %s' % (vr(dst2), vr(src), vr(src + 1)))
    I('v_cvt_pk_bf16_f32 %s, %s, %s' % (vr(dst2 + 1), vr(src + 2), vr(src + 3)))

def hstore(f, soff, imm, tag):
    I('buffer_store_dwordx4 %s, %s, %s, %s offen offset:%d %s' % (vr(f, 4), vr(vL16), sr(dWS, 4), sr(soff), imm, HST), tag)

def program(role):
    KV = role == 'KV'
    dA, pitchA, dB, pitchB = (dQKV, P_QKV, dW1, P_W1) if KV else (dW1, P_W1, dQKV, P_QKV)
    g1add = 1024 if KV else 128
    DS = dict(D0=0, D1=1, D2=2, D4=3, D5=2, RED=0) if KV else dict(D0=2, D1=3, D2=0, D4=1, D5=0, RED=2)
    if KV:
        I('s_lshl_b32 %s, %s, 7' % (sr(t0), sr(sV)))
        I('s_add_u32 %s, %s, %d' % (sr(t2), sr(t0), 1024 + SH - 2048))
        I('s_add_u32 %s, %s, %s' % (sr(t1), sr(sHB), sr(sRr)))
        I('s_lshl_b32 %s, %s, 7' % (sr(t1), sr(t1)))
    else:
        I('s_lshl1_add_u32 %s, %s, %s' % (sr(t0), sr(sRr), sr(sHB)))
        I('s_sub_u32 %s, %s, 2' % (sr(t0), sr(t0)))
        I('s_lshl_b32 %s, %s, 7' % (sr(t0), sr(t0)))
        I('s_add_u32 %s, %s, %d' % (sr(t2), sr(t0), SH - 2048))
        I('s_lshl_b32 %s, %s, 7' % (sr(t1), sr(sV)))
    I('v_mul_u32_u24 v118, %d, v117' % pitchA)
    I('v_add3_u32 %s, v118, v116, %s' % (vr(vD + 2), sr(t2)))
    I('s_mul_i32 %s, %s, %d' % (sr(t4), sr(sKx), pitchA // 2))
    I('v_add_u32 %s, %d, %s' % (vr(vD + 3), g1add - 1024, vr(vD + 2)))
    dma(vD + 2, dA, sr(t4), 2048, ('c', 0))
    dma(vD + 3, dA, sr(t4), 3072, ('c', 0))
    I('v_add_u32 v118, %s, %s' % (sr(sKx), vr(vL16)))
    I('s_mov_b32 m0, %d' % GATE)
    I('v_and_b32 v118, 0x3ff, v118')
    I('global_load_lds_dwordx4 v118, %s' % sr(pG, 2), ('c', 0))
    def kx_next():
        I('s_add_u32 %s, %s, 128' % (sr(sKx), sr(sKx)))
        I('s_and_b32 %s, %s, 0x3ff' % (sr(sKx), sr(sKx)))
    def chunk_thunks(t):
        def a():
            set_m0(S(t % 4)); kx_next(); dma(vD, dX, sr(sKx), 0, ('c', t))
        def b(): dma(vD + 1, dX, sr(sKx), 1024, ('c', t))
        def c():
            I('s_mul_i32 %s, %s, %d' % (sr(t4), sr(sKx), pitchA // 2)); dma(vD + 2, dA, sr(t4), 2048, ('c', t))
        def d(): dma(vD + 3, dA, sr(t4), 3072, ('c', t))
        return [a, b, c, d]
    I('s_lshl_b32 %s, %s, 6' % (sr(t2), sr(sH2)))
    I('s_add_u32 %s, %s, %s' % (sr(t3), sr(t2), sr(t1 if KV else t0)))
    I('v_lshl_add_u32 v118, %s, 3, %s' % (vr(vG_), sr(t3)))
    if KV:
        for k in range(2): I('global_load_dwordx2 %s, v118, %s offset:%d' % (vr(vBias + 2 * k, 2), sr(pB1, 2), k * 32))
        I('s_add_u32 %s, %s, 6' % (sr(t5), sr(sHB)))
        I('s_lshl_b32 %s, %s, 7' % (sr(t5), sr(t5)))
        I('s_add_u32 %s, %s, %s' % (sr(t3), sr(t2), sr(t5)))
        I('v_lshl_add_u32 v118, %s, 3, %s' % (vr(vG_), sr(t3)))
        for k in range(2): I('global_load_dwordx2 %s, v118, %s offset:%d' % (vr(vBias + 4 + 2 * k, 2), sr(pB1, 2), k * 32))
    else:
        for k in range(4): I('global_load_dwordx2 %s, v118, %s offset:%d' % (vr(vBias + 2 * k, 2), sr(pB1, 2), (k & 1) * 32 + (k >> 1) * 128))
    for t in (1, 2, 3):
        for f in chunk_thunks(t): f()
    stamp('p1')
    I('v_mul_u32_u24 v118, %d, v117' % pitchB)
    I('v_add3_u32 %s, v118, v116, %s' % (vr(vE), sr(t1)))
    if KV: I('v_add3_u32 %s, v118, v116, %s' % (vr(vE + 1), sr(t5)))
    srd(dWS, pWS, 0x10000000)
    I('s_or_b32 %s, s2, %s' % (sr(t0), sr(sW)))
    I('s_cmp_lg_u32 %s, 0' % sr(t0))
    lab = newlab('noep')
    I('s_cbranch_scc1 %s' % lab)
    st = e.save()
    I('v_add_u32 v118, 1, %s' % vr(vEp))
    I('v_or_b32 v118, 1, v118')
    I('s_mov_b64 exec, 1')
    I('global_store_dword %s, v118, %s sc1' % (vr(vL16), sr(pDBG, 2)))
    I('global_store_dword %s, v118, %s sc1' % (vr(vL16), sr(pWS, 2)))
    I('s_mov_b64 exec, -1')
    e.restore(st)
    e.label(lab, flush=False)
    I('v_and_b32 v118, 15, %s' % vr(vLane))
    I('v_lshrrev_b32 v119, 1, v118')
    I('v_xor_b32 v119, v119, %s' % vr(vG_))
    I('v_lshlrev_b32 v119, 4, v119')
    I('s_lshl_b32 %s, %s, 12' % (sr(t0), sr(sMt)))
    I('v_lshl_add_u32 v119, v118, 7, v119')
    I('v_add_u32 %s, %s, v119' % (vr(vXa), sr(t0)))
    I('v_xor_b32 %s, 64, %s' % (vr(vXa + 1), vr(vXa)))
    for k in range(2): I('v_xor_b32 %s, 0x1000, %s' % (vr(vXa + 2 + k), vr(vXa + k)))
    for k in range(4): I('v_add_u32 %s, 0x10000, %s' % (vr(vXa + 4 + k), vr(vXa + k)))
    I('v_bfe_u32 v118, %s, 2, 2' % vr(vLane))
    I('v_and_b32 v119, 3, v29')
    I('v_and_b32 v120, 3, %s' % vr(vLane))
    I('v_lshlrev_b32 v120, 3, v120')
    I('v_lshl_add_u32 v120, v119, 5, v120')
    I('v_mov_b32 v31, v120')
    I('v_lshl_add_u32 v120, v118, 7, v120')
    I('v_lshl_add_u32 v120, %s, 12, v120' % vr(vG_))
    I('s_lshl_b32 %s, %s, 6' % (sr(t0), sr(sH2)))
    I('v_xor_b32 %s, %s, v120' % (vr(vWa), sr(t0)))
    I('v_xor_b32 %s, 32, %s' % (vr(vWa + 1), vr(vWa)))
    for k in range(2): I('v_add_u32 %s, 0x10000, %s' % (vr(vWa + 2 + k), vr(vWa + k)))
    I('v_lshlrev_b32 %s, 4, %s' % (vr(vGa), vr(vG_)))
    I('v_add_u32 %s, %d, %s' % (vr(vGa), GATE, vr(vGa)))
    I('s_mov_b32 %s, 0x%x' % (sr(sLog2e), LOG2E))
    I('s_mov_b32 %s, 0x%x' % (sr(sEps), EPS))
    if not KV:
        for grp, a_ in ((0, aG0), (1, aG1)):
            for nt2 in range(2): bias_init([a_ + (nt2 * 2) * 4, a_ + (nt2 * 2 + 1) * 4], vBias + (grp * 2 + nt2) * 2)

    def late_setup():
        L = []
        A = L.append
        for d, p_, n in ((dW2, pW2, 1792 * 1024), (dWO, pWO, 512 * 1024)):
            A('s_sub_u32 %s, %s, %d' % (sr(d), sr(p_), SH)); A('s_subb_u32 %s, %s, 0' % (sr(d + 1), sr(p_ + 1)))
            A('s_mov_b32 %s, 0x%x' % (sr(d + 2), n + SH)); A('s_mov_b32 %s, 0x20000' % sr(d + 3))
        A('s_mov_b32 %s, %s' % (sr(dOUT), sr(pOUT))); A('s_mov_b32 %s, %s' % (sr(dOUT + 1), sr(pOUT + 1)))
        A('s_mov_b32 %s, 0x200000' % sr(dOUT + 2)); A('s_mov_b32 %s, 0x20000' % sr(dOUT + 3))
        A('v_lshlrev_b32 v116, 1, %s' % vr(vG_)); A('v_xor_b32 v116, v30, v116'); A('v_lshlrev_b32 v116, 4, v116')
        A('s_lshl_b32 %s, %s, 14' % (sr(t0), sr(sH2))); A('s_lshl_b32 %s, %s, 7' % (sr(t1), sr(sJ)))
        A('s_add_u32 %s, %s, %s' % (sr(t0), sr(t0), sr(t1)))
        A('v_lshl_add_u32 v116, v29, 10, v116'); A('v_add_u32 %s, %s, v116' % (vr(vSo), sr(t0)))
        A('s_lshr_b32 %s, %s, 1' % (sr(t0), sr(sA_))); A('s_lshl1_add_u32 %s, %s, %s' % (sr(t0), sr(sP), sr(t0)))
        A('s_mul_i32 %s, %s, 7' % (sr(t0), sr(t0))); A('s_and_b32 %s, %s, 1' % (sr(t1), sr(sA_)))
        A('s_add_u32 %s, %s, %s' % (sr(t2), sr(t0), sr(t1))); A('s_lshl_b32 %s, %s, 16' % (sr(sSl + 1), sr(t2)))
        A('s_add_u32 %s, %s, %s' % (sr(t2), sr(t2), sr(t1))); A('s_add_u32 %s, %s, 2' % (sr(t2), sr(t2)))
        A('s_lshl_b32 %s, %s, 16' % (sr(sSl), sr(t2)))
        A('s_lshl1_add_u32 %s, %s, %s' % (sr(t0), sr(t0), sr(t1))); A('s_add_u32 %s, %s, 12' % (sr(t0), sr(t0)))
        A('s_lshl_b32 %s, %s, 15' % (sr(sSl + 2), sr(t0)))
        A('s_lshl4_add_u32 %s, %s, %s' % (sr(t0), sr(sP), sr(sI))); A('s_lshl_b32 %s, %s, 3' % (sr(t0), sr(t0)))
        A('s_add_u32 %s, %s, %s' % (sr(t1), sr(t0), sr(sMt))); A('s_xor_b32 %s, %s, 1' % (sr(t2), sr(t1)))
        A('s_mul_i32 %s, %s, %d' % (sr(t1), sr(t1), 28 * 1024)); A('s_mul_i32 %s, %s, %d' % (sr(t2), sr(t2), 28 * 1024))
        A('s_add_u32 %s, %s, 0x%x' % (sr(sAb), sr(t1), WS_AB)); A('s_add_u32 %s, %s, 0x%x' % (sr(sAb + 1), sr(t2), WS_AB))
        A('s_lshl1_add_u32 %s, %s, %s' % (sr(t0), sr(sH2), sr(t0))); A('s_lshl2_add_u32 %s, %s, %s' % (sr(t0), sr(sP), sr(t0)))
        A('s_xor_b32 %s, %s, 4' % (sr(t1), sr(t0)))
        A('s_mul_i32 %s, %s, %d' % (sr(t2), sr(sA_), 7 * 1024)); A('s_add_u32 %s, %s, 0x%x' % (sr(t2), sr(t2), WS_AB))
        A('s_mul_i32 %s, %s, %d' % (sr(t1), sr(t1), 28 * 1024)); A('s_add_u32 %s, %s, %s' % (sr(sA2), sr(t1), sr(t2)))
        A('s_add_u32 %s, %s, %d' % (sr(sA2 + 1), sr(sA2), 28 * 1024))
        A('s_mul_i32 %s, %s, %d' % (sr(t1), sr(t0), 28 * 1024)); A('s_add_u32 %s, %s, %s' % (sr(sA2 + 2), sr(t1), sr(t2)))
        A('s_add_u32 %s, %s, %d' % (sr(sA2 + 3), sr(sA2 + 2), 28 * 1024))
        A('s_and_b32 %s, %s, 127' % (sr(t0), sr(t0))); A('s_lshl2_add_u32 %s, %s, %s' % (sr(t0), sr(t0), sr(sA_)))
        A('s_lshl_b32 %s, %s, 12' % (sr(t0), sr(t0))); A('s_add_u32 %s, %s, 0x%x' % (sr(sA2 + 4), sr(t0), WS_OB))
        A('s_add_u32 %s, %s, 0x4000' % (sr(sA2 + 5), sr(sA2 + 4)))
        return L

    def p2_thunks(q):
        out = []
        for k in range(4):
            def f(k=k):
                if k == 0: set_m0(S(q))
                if not KV or k % 2 == 0:
                    kx_next()
                    I('s_mul_i32 %s, %s, %d' % (sr(t4), sr(sKx), pitchB // 2))
                    I('s_add_u32 %s, %s, %d' % (sr(t4), sr(t4), SH - k * 1024))
                else:
                    I('s_sub_u32 %s, %s, 1024' % (sr(t4), sr(t4)))
                dma(vE + (k % 2 if KV else 0), dB, sr(t4), k * 1024, ('p2', q))
            out.append(f)
        return out
    def slab_thunks(name, tag='slab'):
        out = []
        if name == 'L6': slot, base, d, add, ks = S4, sSl + 2, dW2, 0, (2, 3)
        elif name in ('D0', 'D1'): slot, base, d, add, ks = S(DS[name]), sSl, dW2, 65536 * (name == 'D1'), range(4)
        elif name == 'D2': slot, base, d, add, ks = S(DS[name]), sSl + 1, dW2, 0, range(4)
        else: slot, base, d, add, ks = S(DS[name]), None, dWO, 65536 * (name == 'D5'), range(4)
        for k in ks:
            def f(k=k):
                if k == ks[0]: set_m0(slot)
                off = add + (k & 1) * 8192 + (0 if name == 'L6' else (k >> 1) * 32768) + SH - k * 1024
                if base is None:
                    I('s_lshl_b32 %s, %s, 17' % (sr(t4), sr(sA_)))
                    I('s_add_u32 %s, %s, %d' % (sr(t4), sr(t4), off))
                else:
                    I('s_add_u32 %s, %s, %d' % (sr(t4), sr(base), off))
                dma(vSo, d, sr(t4), k * 1024, tag)
            out.append(f)
        return out

    def p1_reads(t, s_):
        fb = vF + 20 * s_; hi = (t % 4) >> 1; so = ((t % 4) & 1) * 32768
        lst = []
        xr = lambda mt: lst.append('ds_read_b128 %s, %s offset:%d' % (vr(Xf(t, s_, mt), 4), vr(vXa + hi * 4 + mt * 2 + s_), so))
        def wr(grp, nt2):
            for h in range(2):
                lst.append('ds_read_b64_tr_b16 %s, %s offset:%d' % (vr(fb + (grp * 2 + nt2) * 4 + 2 * h, 2), vr(vWa + hi * 2 + nt2),
                           so + 2048 + grp * 1024 + s_ * 16384 + h * 512))
        xr(0)
        if 'nogate' not in OPT: lst.append('ds_read_b128 %s, %s offset:%d' % (vr(fb + 16, 4), vr(vGa), t * 128 + s_ * 64))
        wr(0, 0); xr(1); wr(0, 1); wr(1, 0); wr(1, 1)
        if 'skipx' in OPT: lst = [x for x in lst if 'b128' not in x]
        if 'halfw' in OPT: lst = lst[:len(lst) - 4]
        return lst
    def p1_mf(t, s_, gate=True, main=True):
        fb = vF + 20 * s_; first = (t == 0 and s_ == 0); lst = []
        if gate: lst.append((aGt, fb + 16, Xf(t, s_, 0), '0' if first else aGt))
        if main:
            for grp, a_ in ((0, aG0), (1, aG1)):
                for nt2 in range(2):
                    for mt in range(2):
                        d = a_ + (nt2 * 2 + mt) * 4; w_ = fb + (grp * 2 + nt2) * 4; x_ = Xf(t, s_, mt)
                        c_ = '0' if (first and KV) else d
                        lst.append((d, x_, w_, c_) if KV else (d, w_, x_, c_))
        return lst
    late = late_setup()
    for t in range(8):
        e.c('pass1 chunk %d' % t)
        e.wait_both(('c', t))
        I('s_barrier')
        if t == 0: stamp()
        stamp('p1')
        if t == 0 or 'nodma' in OPT: th = []
        elif t <= 4: th = chunk_thunks(t + 3)
        elif KV: th = p2_thunks(t - 5)
        elif t < 7: th = p2_thunks(t - 5)
        else: th = slab_thunks('D0')
        extra = []
        if t == 3:
            extra = [(8, 'global_load_dword %s, %s, %s sc1' % (vr(vEp), vr(vT2 + 11), sr(pDBG, 2)))]
            I('v_mov_b32 %s, 0' % vr(vT2 + 11))
        lt = late[(t - 1) * 16: t * 16] if 1 <= t <= 4 else []
        assert len(late) <= 64
        var = OPT.get('v', '0')
        if var == '0': pa, pb = [5, 7], [5, 7]
        elif var == '1': pa, pb = [1, 3, 5, 7], []
        elif var == '2': pa, pb = [0, 4, 8], [2]
        elif var == '3': pa, pb = [-1, -1, -1, -1], []
        elif var == '4': pa, pb = [2, 6], [0, 3]
        if 'nolate' in OPT and t == 1: lt = late
        elif 'nolate' in OPT: lt = []
        fa = spread(p1_reads(t, 0), 2) + list(zip(pa, th[:len(pa)])) + spread(lt[:8], 2, 5)
        if 'prio' in OPT: fa.append((-1, 's_setprio %s' % OPT['prio'][0]))
        weave(p1_mf(t - 1, 1, gate='nogate' not in OPT) if t else [], fa)
        e.wait_lg()
        fb_ = spread(p1_reads(t, 1), 2) + list(zip(pb, th[len(pa):])) + spread(lt[8:], 2, 5) + extra
        if 'prio' in OPT: fb_.append((-1, 's_setprio %s' % OPT['prio'][1]))
        weave(p1_mf(t, 0, gate='nogate' not in OPT), fb_)
    weave(p1_mf(7, 1, main=False), [])
    I('v_readfirstlane_b32 %s, %s' % (sr(sT), vr(vEp)))
    okl = newlab('epok'); lp = newlab('eplp')
    I('s_cmp_lg_u32 %s, 0' % sr(sT))
    I('s_cbranch_scc1 %s' % okl)
    st = e.save()
    I('s_mov_b32 %s, 0' % sr(sSpin))
    e.label(lp, flush=False)
    I('global_load_dword %s, %s, %s sc1' % (vr(vEp), vr(vT2 + 11), sr(pDBG, 2)))
    e.wait_vm_all()
    I('v_readfirstlane_b32 %s, %s' % (sr(sT), vr(vEp)))
    I('s_add_u32 %s, %s, 1' % (sr(sSpin), sr(sSpin)))
    I('s_cmp_lg_u32 %s, 0' % sr(sT))
    I('s_cbranch_scc1 %s' % okl)
    I('s_cmp_lt_u32 %s, 0x100000' % sr(sSpin))
    I('s_cbranch_scc1 %s' % lp)
    e.restore(st)
    e.label(okl, flush=False)
    I('v_and_b32 v116, 15, %s' % vr(vLane))
    I('s_lshl_b32 %s, %s, 6' % (sr(t0), sr(sMt)))
    I('s_add_u32 %s, %s, %d' % (sr(t0), sr(t0), GS))
    I('v_lshl_add_u32 v29, v116, 2, %s' % sr(t0))
    mlast = p1_mf(7, 1, gate=False)
    weave(mlast[:4], [])
    I('v_mul_f32 %s, %s, %s' % (vr(vG0), sr(sLog2e), vr(aGt)))
    I('v_exp_f32_e64 %s, -%s' % (vr(vG0), vr(vG0)))
    I('v_add_f32 %s, 1.0, %s' % (vr(vG0), vr(vG0)))
    I('v_rcp_f32 %s, %s' % (vr(vG0), vr(vG0)))
    I('ds_write_b32 v29, %s' % vr(vG0))
    I('v_xor_b32 v29, 64, v29')
    I('v_sub_f32 %s, 1.0, %s' % (vr(vOm0), vr(vG0)))
    weave(mlast[4:], [])
    stamp(); stamp('p1')

    aG2, aG3 = aG0, aG1
    def p2_reads(k):
        t, s_ = k >> 1, k & 1
        fb = vF + (16 * (k & 1) + 8 if KV else 8 * (k & 1) + 16)
        lst = []
        if KV: slot, sub = t >> 1, (t & 1) * 2
        else: slot, sub = t >> 2, t & 3
        hi = slot >> 1; so = (slot & 1) * 32768
        for grp in range(2 if KV else 1):
            for nt2 in range(2):
                for h in range(2):
                    lst.append('ds_read_b64_tr_b16 %s, %s offset:%d' % (vr(fb + (grp * 2 + nt2) * 4 + 2 * h, 2), vr(vWa + hi * 2 + nt2),
                               so + (sub + grp) * 1024 + s_ * 16384 + h * 512))
        return lst
    def p2_mf(k):
        t, s_ = k >> 1, k & 1
        fb = vF + (16 * (k & 1) + 8 if KV else 8 * (k & 1) + 16)
        lst = []
        for nt2 in range(2):
            for mt in range(2):
                d = aG2 + (nt2 * 2 + mt) * 4
                lst.append((d, fb + nt2 * 4, Xf(t, s_, mt), '0' if (k == 0 and not KV) else d))
        if KV:
            for nt2 in range(2): lst.append((aG3 + nt2 * 4, fb + 8 + nt2 * 4, Xf(t, s_, 0), aG3 + nt2 * 4))
        return lst

    if KV:
        pk, vf, ones, kvd = vF, vF + 8, vF + 16, vF + 20
        for k in range(4): I('v_mov_b32 %s, 0x3f803f80' % vr(ones + k))
        for nt2 in range(2):
            for mt in range(2):
                phi4(aG0 + (nt2 * 2 + mt) * 4, pk + nt2 * 4 + mt * 2)
                s_ = aG1 + (nt2 * 2 + mt) * 4
                I('v_cvt_pk_bf16_f32 %s, %s, %s' % (vr(vf + nt2 * 4 + mt * 2), vr(s_), vr(s_ + 1)))
                I('v_cvt_pk_bf16_f32 %s, %s, %s' % (vr(vf + nt2 * 4 + mt * 2 + 1), vr(s_ + 2), vr(s_ + 3)))
            mfma(kvd + nt2 * 4, pk + nt2 * 4, vf + nt2 * 4, '0')
            mfma(kvd + 8 + nt2 * 4, ones, pk + nt2 * 4, '0')
        I('s_add_u32 %s, %s, %d' % (sr(t0), sr(sM4), S4 + 2048))
        I('v_add_u32 v120, %s, %s' % (sr(t0), vr(vL16)))
        I('s_lshl_b32 %s, %s, 7' % (sr(t0), sr(sW)))
        I('s_add_u32 %s, %s, %d' % (sr(t0), sr(t0), ZB))
        I('v_and_b32 v121, 15, %s' % vr(vLane))
        I('v_lshl_add_u32 v122, v121, 2, %s' % sr(t0))
        I('s_bfe_u32 %s, %s, 0x10001' % (sr(t0), sr(sW)))
        I('s_lshl2_add_u32 %s, %s, %s' % (sr(t0), sr(t0), sr(sH2)))
        I('s_lshl_b32 %s, %s, 10' % (sr(t0), sr(t0)))
        I('s_add_u32 %s, %s, %d' % (sr(t0), sr(t0), S4 + 2048))
        I('v_add_u32 v123, %s, %s' % (sr(t0), vr(vL16)))
        I('v_lshlrev_b32 v124, 2, %s' % vr(vLane))
        I('v_add_u32 v124, %d, v124' % ZB)
        for nt2 in range(2):
            I('ds_write_b128 v120, %s offset:%d' % (vr(kvd + nt2 * 4, 4), nt2 * 1024))
            I('ds_write_b32 v122, %s offset:%d' % (vr(kvd + 8 + nt2 * 4), nt2 * 64))
        for nt2 in range(2): bias_init([aG2 + (nt2 * 2) * 4, aG2 + (nt2 * 2 + 1) * 4], vBias + nt2 * 2)
        for nt2 in range(2): bias_init([aG3 + nt2 * 4], vBias + 4 + nt2 * 2)
    e.wait_both(('p2', 0))
    I('s_barrier')
    I('ds_read_b32 %s, v29' % vr(vG1))
    if KV:
        tk, tz = vF + 24, aG1 + 8
        for aa in range(4): I('ds_read_b128 %s, v123 offset:%d' % (vr(tk + aa * 4, 4), aa * 8192))
        for aa in range(4): I('ds_read_b32 %s, v124 offset:%d' % (vr(tz + aa), aa * 256))
        for x in p2_reads(0): I(x)
        for f in p2_thunks(3): f()
        I('s_lshl4_add_u32 %s, %s, %s' % (sr(t0), sr(sV), sr(sI)))
        I('s_and_b32 %s, %s, 3' % (sr(t1), sr(sW)))
        I('s_lshl2_add_u32 %s, %s, %s' % (sr(t1), sr(t0), sr(t1)))
        I('s_lshl_b32 %s, %s, 10' % (sr(t1), sr(t1)))
        I('s_add_u32 %s, %s, 0x%x' % (sr(t1), sr(t1), WS_KVP))
        for aa in (1, 3):
            for k in range(4): I('v_add_f32 %s, %s, %s' % (vr(tk + (aa - 1) * 4 + k), vr(tk + (aa - 1) * 4 + k), vr(tk + aa * 4 + k)))
        for k in range(4): I('v_add_f32 %s, %s, %s' % (vr(vF + k), vr(tk + k), vr(tk + 8 + k)))
        I('s_cmp_lt_u32 %s, 4' % sr(sW))
        I('s_cselect_b64 exec, -1, 0')
        I('buffer_store_dwordx4 %s, %s, %s, %s offen sc1' % (vr(vF, 4), vr(vL16), sr(dWS, 4), sr(t1)), 'kvp')
        I('s_mov_b64 exec, -1')
        I('v_add_f32 %s, %s, %s' % (vr(tz), vr(tz), vr(tz + 1)))
        I('v_add_f32 %s, %s, %s' % (vr(tz + 2), vr(tz + 2), vr(tz + 3)))
        I('v_lshlrev_b32 v120, 6, %s' % vr(vLane))
        I('v_add_f32 %s, %s, %s' % (vr(tz), vr(tz), vr(tz + 2)))
        I('s_lshl_b32 %s, %s, 10' % (sr(t1), sr(sV)))
        I('s_add_u32 %s, %s, %s' % (sr(t1), sr(t1), sr(sI)))
        I('s_lshl_b32 %s, %s, 2' % (sr(t1), sr(t1)))
        I('s_add_u32 %s, %s, 0x%x' % (sr(t1), sr(t1), WS_ZP))
        I('s_cmp_eq_u32 %s, 4' % sr(sW))
        I('s_cselect_b64 exec, -1, 0')
        I('buffer_store_dword %s, v120, %s, %s offen sc1' % (vr(tz), sr(dWS, 4), sr(t1)), 'kvp')
        I('s_mov_b64 exec, -1')
        I('s_lshl_b32 %s, %s, 5' % (sr(t5), sr(sV)))
        I('s_add_u32 %s, %s, %s' % (sr(t5), sr(t5), sr(sI)))
        I('s_lshl_b32 %s, %s, 2' % (sr(t5), sr(t5)))
        I('s_add_u32 %s, %s, 0x%x' % (sr(t5), sr(t5), WS_KVF))
        I('v_sub_f32 %s, 1.0, %s' % (vr(vOm1), vr(vG1)))
    else:
        for x in p2_reads(0): I(x)
        for f in slab_thunks('D1'): f()
        I('s_and_b32 %s, %s, 3' % (sr(t0), sr(sV)))
        I('s_mul_i32 %s, %s, 7' % (sr(t0), sr(t0)))
        I('s_add_u32 %s, %s, %s' % (sr(t0), sr(t0), sr(sH2)))
        I('s_lshl_b32 %s, %s, 10' % (sr(t0), sr(t0)))
        for mt in range(2):
            if mt == 1: I('v_sub_f32 %s, 1.0, %s' % (vr(vOm1), vr(vG1)))
            I('s_add_u32 %s, %s, %s' % (sr(t1), sr(t0), sr(sAb + mt)))
            for grp, a_ in ((0, aG0), (1, aG1)):
                f = vF + (mt * 2 + grp) * 4
                for nt2 in range(2): h_vals(a_ + (nt2 * 2 + mt) * 4, f + 2 * nt2, vOm0 + mt)
                hstore(f, t1, grp * 2048, 'h')
    I('s_lshl1_add_u32 %s, %s, %s' % (sr(t3), sr(sI), sr(sP)))
    I('s_lshl_b32 %s, %s, 7' % (sr(t3), sr(t3)))
    I('s_add_u32 %s, %s, 0x%x' % (sr(t3), sr(t3), WS_HF))
    stamp()
    per = 4 if KV else 8
    pend = []
    for k in range(16):
        nxt = []
        if k + 1 < 16:
            if (k + 1) % per == 0:
                q = (k + 1) // per
                e.wait_both([('p2', q), 'kvp', 'h'])
                I('s_barrier')
                if q == 1:
                    if KV: flag_store(t5, vT2)
                    else:
                        I('s_lshl2_add_u32 %s, %s, %s' % (sr(t5), sr(sJ), sr(t3)))
                        flag_store(t5, vT2)
                if KV: pend = slab_thunks(('D0', 'D1', 'D2')[q - 1]) + (slab_thunks('L6') if q == 1 else [])
                else: pend = slab_thunks('D2') + slab_thunks('L6')
            else:
                e.wait_lg()
            nxt = p2_reads(k + 1)
        else:
            e.wait_lg()
        fl = spread(nxt, 2)
        for pos in ((3, 5) if KV else (2,)):
            if pend: fl.append((pos, pend.pop(0)))
        if not KV and k == 12:
            I('s_lshl_b32 %s, %s, 7' % (sr(t5), sr(sV)))
            I('s_add_u32 %s, %s, 0x%x' % (sr(t5), sr(t5), WS_KVF))
            I('v_lshlrev_b32 v30, 2, %s' % vr(vLane))
        if not KV and k == 14: fl.append((3, lambda: poll_issue(30, t5, 0xffff)))
        weave(p2_mf(k), fl)
    assert not pend
    stamp()

    accS = lambda u, mt: 32 + (u * 2 + mt) * 4
    accO = lambda u, mt: 64 + (u * 2 + mt) * 4
    Ar = lambda n, mt: 96 + ((n % 6) * 2 + mt) * 4
    Bf = lambda ls, u: 144 + (ls * 4 + u) * 4
    vBa = 4; vA1 = 12; vRw = 13; vRr = 16; vOo = 17; vB2 = 18; vOmf = 20; vL4 = 22
    def b_reads(name, regs_ls):
        lst = []
        if name == 'L6': slot_hi, so, subs = 2, 0, (1,)
        else: slot_hi, so, subs = DS[name] >> 1, (DS[name] & 1) * 32768, (0, 1)
        for sub, ls in zip(subs, regs_ls):
            for u in range(4):
                for h in range(2):
                    lst.append((slot_hi, 'ds_read_b64_tr_b16 %s, %%s offset:%d' % (vr(Bf(ls, u) + 2 * h, 2), so + h * 4096 + sub * 2048), u))
        return lst
    def p2_setup_a():
        I('v_lshrrev_b32 v29, 2, %s' % vr(vLane))
        I('s_lshl_b32 %s, %s, 13' % (sr(t0), sr(sA_)))
        I('v_lshl_add_u32 v29, v29, 7, v31')
        I('v_add_u32 v29, %s, v29' % sr(t0))
        for u in range(4):
            I('s_add_u32 %s, %s, %d' % (sr(t0), sr(sA_), u))
            I('s_and_b32 %s, %s, 3' % (sr(t0), sr(t0)))
            I('s_lshl_b32 %s, %s, 5' % (sr(t1), sr(t0)))
            I('v_xor_b32 %s, %s, v29' % (vr(vBa + u), sr(t1)))
            I('s_lshl2_add_u32 %s, %s, %s' % (sr(t1), sr(sH2), sr(t0)))
            I('s_mul_i32 %s, %s, 6144' % (sr(t1), sr(t1)))
            I('s_add_u32 %s, %s, %d' % (sr(t1), sr(t1), S(DS['RED']) + max(u - 1, 0) * 2048))
            I('v_add_u32 %s, %s, %s' % (vr(vRr if u == 0 else vRw + u - 1), sr(t1), vr(vL16)))
            I('v_add_u32 %s, 0x10000, %s' % (vr(vBa + 4 + u), vr(vBa + u)))
    def emit_b(lst):
        for hi, txt, u in lst: I(txt % vr(vBa + 4 * hi + u))

    e.wait_both('slab')
    I('s_barrier')
    for f in slab_thunks('D4', 'wo'): f()
    if KV:
        I('s_and_b32 %s, %s, 3' % (sr(t0), sr(sV)))
        I('s_mul_i32 %s, %s, 7' % (sr(t0), sr(t0)))
        I('s_add_u32 %s, %s, %s' % (sr(t0), sr(t0), sr(sH2)))
        I('s_add_u32 %s, %s, 4' % (sr(t0), sr(t0)))
        I('s_lshl_b32 %s, %s, 10' % (sr(t0), sr(t0)))
        for mt in range(2):
            f = vF + mt * 4
            for nt2 in range(2): h_vals(aG2 + (nt2 * 2 + mt) * 4, f + 2 * nt2, vOm0 + mt)
            I('s_add_u32 %s, %s, %s' % (sr(t1), sr(t0), sr(sAb + mt)))
            hstore(f, t1, 0, 'h')
        for nt2 in range(2): h_vals(aG3 + nt2 * 4, vF + 8 + 2 * nt2, vOm0)
        I('s_lshl1_add_u32 %s, %s, %s' % (sr(t0), sr(sC), sr(sH2)))
        I('s_mul_i32 %s, %s, %d' % (sr(t0), sr(t0), 7 * 1024))
        I('s_add_u32 %s, %s, %d' % (sr(t0), sr(t0), 6 * 1024))
        I('s_add_u32 %s, %s, %s' % (sr(t1), sr(t0), sr(sAb)))
        hstore(vF + 8, t1, 0, 'h')
        I('s_lshl2_add_u32 %s, %s, %s' % (sr(t5), sr(sJ), sr(t3)))
        p2_setup_a()
    else:
        poll_check(30, t5, 0xffff)
        I('s_lshl1_add_u32 %s, %s, %s' % (sr(t0), sr(sV), sr(sH2)))
        I('s_lshl_b32 %s, %s, 11' % (sr(t2), sr(t0)))
        I('s_add_u32 %s, %s, 0x%x' % (sr(t2), sr(t2), WS_ZP))
        I('s_lshl_b32 %s, %s, 5' % (sr(t0), sr(t0)))
        I('s_add_u32 %s, %s, %s' % (sr(t0), sr(t0), sr(sA_)))
        I('s_lshl_b32 %s, %s, 10' % (sr(t1), sr(t0)))
        I('s_add_u32 %s, %s, 0x%x' % (sr(t1), sr(t1), WS_KVP))
        for k in range(8):
            I('buffer_load_dwordx4 %s, %s, %s, %s offen sc1' % (vr(128 + 4 * k, 4), vr(vL16), sr(dWS, 4), sr(t1)))
            if k < 7: I('s_add_u32 %s, %s, 4096' % (sr(t1), sr(t1)))
        I('v_and_b32 v120, 15, %s' % vr(vLane))
        I('v_lshlrev_b32 v120, 6, v120')
        I('v_lshl_add_u32 v120, %s, 4, v120' % vr(vG_))
        for nt2 in range(2):
            I('buffer_load_dwordx4 %s, v120, %s, %s offen offset:%d sc1' % (vr(160 + 4 * nt2, 4), sr(dWS, 4), sr(t2), nt2 * 1024))
        pq = vF
        for nt2 in range(2):
            for mt in range(2): phi4(aG2 + (nt2 * 2 + mt) * 4, pq + (nt2 * 2 + mt) * 2)
        p2_setup_a()
        I('s_lshl2_add_u32 %s, %s, %s' % (sr(t0), sr(sA_), sr(sH2)))
        I('s_lshl_b32 %s, %s, 10' % (sr(t0), sr(t0)))
        I('s_add_u32 %s, %s, %d' % (sr(t0), sr(t0), S4 + 8192))
        I('v_add_u32 v120, %s, %s' % (sr(t0), vr(vL16)))
        I('s_lshl_b32 %s, %s, 13' % (sr(t0), sr(sH2)))
        I('s_add_u32 %s, %s, %d' % (sr(t0), sr(t0), S4 + 8192))
        I('v_add_u32 v121, %s, %s' % (sr(t0), vr(vL16)))
        I('v_mov_b32 v122, 1.0')
        for st_ in (1, 2, 4):
            for k in range(0, 8, 2 * st_):
                for c_ in range(4): I('v_add_f32 %s, %s, %s' % (vr(128 + 4 * k + c_), vr(128 + 4 * k + c_), vr(128 + 4 * (k + st_) + c_)))
        I('ds_write_b128 v120, v[128:131]')
        zD = 40
        for m in range(4):
            for nt2 in range(2):
                I('v_mfma_f32_16x16x4_f32 %s, %s, v122, %s' % (vr(zD + nt2 * 4, 4), vr(160 + 4 * nt2 + m), '0' if m == 0 else vr(zD + nt2 * 4, 4)))
        e.wait_lg()
        I('s_barrier')
        for k in range(4): I('ds_read_b128 %s, v121 offset:%d' % (vr(128 + 4 * k, 4), (k >> 1) * 4096 + (k & 1) * 1024))
        kvT = 48
        for nt2 in range(2):
            I('v_cvt_pk_bf16_f32 %s, %s, %s' % (vr(kvT + nt2 * 4 + 2), vr(zD + nt2 * 4), vr(zD + nt2 * 4 + 1)))
            I('v_cvt_pk_bf16_f32 %s, %s, %s' % (vr(kvT + nt2 * 4 + 3), vr(zD + nt2 * 4 + 2), vr(zD + nt2 * 4 + 3)))
        nd = 84
        def m16(d, a, b): I('v_mfma_f32_16x16x16_bf16 %s, %s, %s, 0' % (vr(d, 4), vr(a, 2), vr(b, 2)))
        for nt2 in range(2):
            for mt in range(2): m16(nd + (nt2 * 2 + mt) * 8 + 4, kvT + nt2 * 4 + 2, pq + (nt2 * 2 + mt) * 2)
        for nt2 in range(2):
            s_ = 128 + nt2 * 8
            for c_ in range(4): I('v_add_f32 %s, %s, %s' % (vr(s_ + c_), vr(s_ + c_), vr(s_ + 4 + c_)))
            I('v_cvt_pk_bf16_f32 %s, %s, %s' % (vr(kvT + nt2 * 4), vr(s_), vr(s_ + 1)))
            I('v_cvt_pk_bf16_f32 %s, %s, %s' % (vr(kvT + nt2 * 4 + 1), vr(s_ + 2), vr(s_ + 3)))
        for nt2 in range(2):
            for mt in range(2): m16(nd + (nt2 * 2 + mt) * 8, kvT + nt2 * 4, pq + (nt2 * 2 + mt) * 2)
        for nt2 in range(2):
            for mt in range(2):
                d_ = nd + (nt2 * 2 + mt) * 8 + 4
                I('v_add_f32 %s, %s, %s' % (vr(d_), sr(sEps), vr(d_)))
        for nt2 in range(2):
            for mt in range(2):
                d_ = nd + (nt2 * 2 + mt) * 8 + 4
                I('v_rcp_f32 %s, %s' % (vr(d_), vr(d_)))
        for nt2 in range(2):
            for mt in range(2):
                d_ = nd + (nt2 * 2 + mt) * 8 + 4
                I('v_mul_f32 %s, %s, %s' % (vr(d_), vr(d_), vr(vG0 + mt)))
        I('s_lshl3_add_u32 %s, %s, %s' % (sr(t0), sr(sI), sr(sMt)))
        I('s_lshl3_add_u32 %s, %s, %s' % (sr(t0), sr(t0), sr(sV)))
        I('s_lshl1_add_u32 %s, %s, %s' % (sr(t0), sr(t0), sr(sH2)))
        I('s_lshl_b32 %s, %s, 10' % (sr(t0), sr(t0)))
        I('s_add_u32 %s, %s, 0x%x' % (sr(t0), sr(t0), WS_OB))
        I('s_xor_b32 %s, %s, 0x4000' % (sr(t1), sr(t0)))
        of = 56
        for mt in range(2):
            for nt2 in range(2):
                n_ = nd + (nt2 * 2 + mt) * 8; d_ = n_ + 4
                for c_ in range(4): I('v_mul_f32 %s, %s, %s' % (vr(n_ + c_), vr(n_ + c_), vr(d_)))
                I('v_cvt_pk_bf16_f32 %s, %s, %s' % (vr(of + mt * 4 + nt2 * 2), vr(n_), vr(n_ + 1)))
                I('v_cvt_pk_bf16_f32 %s, %s, %s' % (vr(of + mt * 4 + nt2 * 2 + 1), vr(n_ + 2), vr(n_ + 3)))
            I('buffer_store_dwordx4 %s, %s, %s, %s offen sc1' % (vr(of + mt * 4, 4), vr(vL16), sr(dWS, 4), sr(t0 + mt)), 'h')
        I('s_lshl_b32 %s, %s, 5' % (sr(t5), sr(sI)))
        I('s_add_u32 %s, %s, %s' % (sr(t5), sr(t5), sr(sV)))
        I('s_lshl_b32 %s, %s, 2' % (sr(t5), sr(t5)))
        I('s_add_u32 %s, %s, 0x%x' % (sr(t5), sr(t5), WS_OF))
    stamp()
    I('v_lshlrev_b32 %s, 2, %s' % (vr(vL4), vr(vLane)))
    poll_issue(vL4, t3, 0xcc)
    I('v_add_u32 %s, 0x1000, %s' % (vr(vA1), vr(vL16)))
    emit_b(b_reads('D0', (0, 1)))
    steps = [('S', l) for l in range(4)] + [('O', l) for l in range(4)] + [('S', l) for l in (4, 5, 6)] + \
            [('O', l) for l in (4, 5, 6)] + [('Q', l) for l in range(4)]
    def a_load(n):
        kind, ls = steps[n]
        base = sA2 + {'S': 0, 'O': 2, 'Q': 4}[kind]
        out = []
        for mt in range(2):
            out.append('buffer_load_dwordx4 %s, %s, %s, %s offen offset:%d sc1' % (vr(Ar(n, mt), 4), vr(vL16 if ls < 4 else vA1),
                       sr(dWS, 4), sr(base + mt), (ls % 4) * 1024))
        return out
    poll_check(vL4, t3, 0xcc)
    for n in range(6):
        for x in a_load(n): I(x)
    emit_b(b_reads('D1', (2, 3)))
    emit_b(b_reads('D2', (4, 5)))
    for u in range(4): I('v_add_u32 %s, 0x20000, %s' % (vr(64 + u), vr(vBa + u)))
    for hi, txt, u in b_reads('L6', (6,)): I(txt % vr(64 + u))
    I('v_and_b32 v29, 15, %s' % vr(vLane))
    I('s_lshl1_add_u32 %s, %s, %s' % (sr(t0), sr(sP), sr(sH2)))
    I('s_lshl_b32 %s, %s, 5' % (sr(t0), sr(t0)))
    I('v_add_u32 v29, %s, v29' % sr(t0))
    I('v_lshlrev_b32 v30, 2, v29')
    I('v_add_u32 v30, %d, v30' % GS)
    I('ds_read_b32 %s, v30' % vr(vOmf))
    I('ds_read_b32 %s, v30 offset:64' % vr(vOmf + 1))
    I('s_lshl2_add_u32 %s, %s, %s' % (sr(t0), sr(sJ), sr(sA_)))
    I('s_lshl_b32 %s, %s, 5' % (sr(t0), sr(t0)))
    I('v_lshl_add_u32 v30, %s, 3, %s' % (vr(vG_), sr(t0)))
    I('global_load_dwordx2 %s, v30, %s' % (vr(vB2, 2), sr(pB2, 2)))
    I('s_lshl_b32 %s, %s, 17' % (sr(t0), sr(sI)))
    I('v_lshl_add_u32 %s, v29, 10, v30' % vr(vOo))
    I('v_add_u32 %s, %s, %s' % (vr(vOo), sr(t0), vr(vOo)))
    e.wait_both('h')
    I('s_barrier')
    flag_store(t5, 29)
    stamp()
    sEx, sXf, sOf = sAb, sAb + 1, sSl
    I('s_lshl_b32 %s, s2, 14' % sr(t0))
    I('s_lshl_b32 %s, %s, 11' % (sr(t1), sr(sW)))
    I('s_add_u32 %s, %s, %s' % (sr(t0), sr(t0), sr(t1)))
    I('s_add_u32 %s, %s, 0x%x' % (sr(sEx), sr(t0), WS_EX))
    I('s_lshl_b32 %s, s2, 7' % sr(t0))
    I('s_lshl2_add_u32 %s, %s, %s' % (sr(t0), sr(sW), sr(t0)))
    I('s_add_u32 %s, %s, 0x%x' % (sr(sXf), sr(t0), WS_XF))
    I('s_lshl_b32 %s, %s, 7' % (sr(t0), sr(sI)))
    I('s_add_u32 %s, %s, 0x%x' % (sr(sOf), sr(t0), WS_OF))
    for mt in range(2): I('v_sub_f32 %s, 1.0, %s' % (vr(vOmf + mt), vr(vOmf + mt)))
    pend = slab_thunks('D5', 'wo')

    def reduce_lds(acc):
        for u in range(1, 4):
            for mt in range(2):
                I('ds_write_b128 %s, %s offset:%d' % (vr(vRw + u - 1), vr(acc(u, mt), 4), mt * 1024))
    def reduce_rd(acc):
        for u in range(1, 4):
            for mt in range(2):
                I('ds_read_b128 %s, %s offset:%d' % (vr(acc(u, mt), 4), vr(vRr), (u - 1) * 2048 + mt * 1024))
    def reduce_add(acc):
        for mt in range(2):
            for c_ in range(4): I('v_add_f32 %s, %s, %s' % (vr(acc(0, mt) + c_), vr(acc(0, mt) + c_), vr(acc(1, mt) + c_)))
            for c_ in range(4): I('v_add_f32 %s, %s, %s' % (vr(acc(2, mt) + c_), vr(acc(2, mt) + c_), vr(acc(3, mt) + c_)))
            for c_ in range(4): I('v_add_f32 %s, %s, %s' % (vr(acc(0, mt) + c_), vr(acc(0, mt) + c_), vr(acc(2, mt) + c_)))

    for n, (kind, ls) in enumerate(steps):
        acc = accS if kind == 'S' else accO
        mf = []
        for mt in range(2):
            for u in range(4):
                mf.append((acc(u, mt), Bf(ls, u), Ar(n, mt), '0' if n in (0, 4) else acc(u, mt)))
        fl = []
        if n == 0: fl.append((1, lambda: poll_issue(vL4, t3, 0x33)))
        if n == 2: poll_check(vL4, t3, 0x33); stamp()
        if n == 6: fl.append((1, lambda: poll_issue(vL4, sOf, 0xff)))
        if n == 8: poll_check(vL4, sOf, 0xff); stamp()
        if n + 6 < len(steps):
            ld = a_load(n + 6)
            fl += [(3, ld[0]), (7, ld[1])]
        if pend and n < 4: fl.append((5, pend.pop(0)))
        if n == 11:
            reduce_lds(accS)
            e.wait_both('wo')
            I('s_barrier')
            reduce_rd(accS)
            fl += spread([t_ % vr(vBa + 4 * hi + u) for hi, t_, u in b_reads('D4', (0, 1))], 2, 0)
        if n == 12:
            reduce_add(accS)
            for mt in range(2):
                I('buffer_store_dwordx4 %s, %s, %s, %s offen offset:%d sc1' % (vr(accS(0, mt), 4), vr(vL16), sr(dWS, 4), sr(sEx), mt * 1024), 'ex')
            fl += spread([t_ % vr(vBa + 4 * hi + u) for hi, t_, u in b_reads('D5', (2, 3))], 2, 0)
        if n == 15:
            e.wait_vm('ex')
            flag_store(sXf, 29, wave0_only=False)
            I('s_xor_b32 %s, %s, 0x80' % (sr(sXf), sr(sXf)))
            I('s_xor_b32 %s, %s, 0x4000' % (sr(sEx), sr(sEx)))
            e.wait_lg()
            I('s_barrier')
        if n == 17: poll_issue(vL16, sXf, 1)
        weave(mf, fl)
    stamp()
    reduce_lds(accO)
    poll_check(vL16, sXf, 1)
    for mt in range(2):
        I('buffer_load_dwordx4 %s, %s, %s, %s offen offset:%d sc1' % (vr(32 + mt * 4, 4), vr(vL16), sr(dWS, 4), sr(sEx), mt * 1024))
    e.wait_lg()
    I('s_barrier')
    reduce_rd(accO)
    bias_init([40], vB2)
    I('s_mov_b32 %s, 0x4000' % sr(t0))
    for mt in range(2):
        for c_ in range(4): I('v_fma_f32 %s, %s, %s, %s' % (vr(accO(0, mt) + c_), vr(40 + c_), vr(vOmf + mt), vr(accO(0, mt) + c_)))
    reduce_add(accO)
    for mt in range(2):
        for c_ in range(4): I('v_add_f32 %s, %s, %s' % (vr(accO(0, mt) + c_), vr(accO(0, mt) + c_), vr(32 + mt * 4 + c_)))
        I('v_cvt_pk_bf16_f32 %s, %s, %s' % (vr(44 + mt * 2), vr(accO(0, mt)), vr(accO(0, mt) + 1)))
        I('v_cvt_pk_bf16_f32 %s, %s, %s' % (vr(45 + mt * 2), vr(accO(0, mt) + 2), vr(accO(0, mt) + 3)))
        I('buffer_store_dwordx2 %s, %s, %s, %s offen' % (vr(44 + mt * 2, 2), vr(vOo), sr(dOUT, 4), '0' if mt == 0 else sr(t0)))
    if PROF:
        e.wait_vm_all()
        stamp(OPT.get('st', 'main'))
        I('s_cmp_lg_u32 %s, 0' % sr(sW))
        I('s_cbranch_scc1 L_end')
        for k in range(nstamp[0]): I('v_writelane_b32 v28, %s, %d' % (sr(sStamp + k), k))
        I('s_getreg_b32 %s, hwreg(HW_REG_XCC_ID)' % sr(t0))
        I('v_writelane_b32 v28, %s, 15' % sr(t0))
        I('s_lshl_b32 %s, s2, 6' % sr(t0))
        I('s_add_u32 %s, %s, 0x%x' % (sr(t0), sr(t0), WS_PROF))
        I('s_mov_b64 exec, 0xffff')
        I('buffer_store_dword v28, %s, %s, %s offen' % (vr(vL4), sr(dWS, 4), sr(t0)))
    I('s_endpgm')

program('KV')
e.restore(st0); nstamp[0] = ns0
e.label('L_roleQ', flush=False)
program('Q')
e.label('L_end', flush=False)
I('s_endpgm')

hdr = open('cdna_kernels/%s.s.ref' % NAME).read().split('; Override launch')[0]
src = hdr + '; @launch grid=(256,1,1) block=(512,1,1) lds=163840\n'
src += '.amdgcn_target "amdgcn-amd-amdhsa--gfx950"\n.text\n.globl %s_kernel\n.p2align 8\n.type %s_kernel,@function\n%s_kernel:\n' % (NAME, NAME, NAME)
src += e.text()
src += '''.section .rodata,"a"
.p2align 6
.amdhsa_kernel %s_kernel
  .amdhsa_next_free_vgpr 256
  .amdhsa_next_free_sgpr 102
  .amdhsa_accum_offset 256
  .amdhsa_group_segment_fixed_size 0
  .amdhsa_kernarg_size 96
  .amdhsa_user_sgpr_count 2
  .amdhsa_user_sgpr_kernarg_segment_ptr 1
  .amdhsa_system_sgpr_workgroup_id_x 1
.end_amdhsa_kernel
''' % NAME
open(OUT, 'w').write(src)
print('wrote', OUT, 'instrs', e.ninstr, 'nops', e.nop_count, 'stamps', nstamp[0])
```
